```python
import torch

def _softmax(x, axis=-1):
    return torch.softmax(x, dim=axis)
def _gelu(x):
    return torch.nn.functional.gelu(x, approximate="tanh")
def _silu(x):
    return torch.nn.functional.silu(x)
def _sigmoid(x):
    return torch.sigmoid(x)
def _layernorm(x, axis=-1, eps=1e-5):
    m = x.mean(dim=axis, keepdim=True)
    v = x.var(dim=axis, keepdim=True, unbiased=False)
    return (x - m) / torch.sqrt(v + eps)
def _scatter_add(tgt, idx, src, axis=0):
    return tgt.clone().index_add_(axis, idx, src)
def _segment_sum(src, seg, n):
    out = torch.zeros((n,) + src.shape[1:], dtype=src.dtype)
    return out.index_add_(0, seg, src)
def _pad(x, pw):
    flat = tuple(v for pair in reversed(pw) for v in pair)
    return torch.nn.functional.pad(x, flat)

kernel_name = 'sequential_preLN__ssm_conv_h3__glu_gated_swiglu__prompt'

def setup_inputs():

    _w = (lambda a: (lambda t: t.to(torch.bfloat16) if t.is_floating_point() else t)(torch.as_tensor(a)))
    def _A_setup():
        B, S, D = 1, 2048, 512
        ks = 4
        return {
            "q": _w((lambda *s: torch.randn(*s, dtype=torch.bfloat16) * 0.05)(B, S, D)),
            "k": _w((lambda *s: torch.randn(*s, dtype=torch.bfloat16) * 0.2)(B, S, D)),
            "v": _w((lambda *s: torch.randn(*s, dtype=torch.bfloat16) * 0.2)(B, S, D)),
            "shift_k": _w((lambda *s: torch.randn(*s, dtype=torch.bfloat16) * 0.2)(D, ks) * 0.5),
            "ssm_k": _w((lambda *s: torch.randn(*s, dtype=torch.bfloat16) * 0.4)(D, S) * (1.0 / S ** 0.5)),
            "ssm_D": _w((lambda *s: torch.randn(*s, dtype=torch.bfloat16) * 0.2)(D)),
        }
    _A_in = _A_setup()

    def _B_setup():
        B, S, D, F = 1, 2048, 512, 1792
        return {
            "x": _w((lambda *s: torch.randn(*s, dtype=torch.bfloat16) * 0.05)(B, S, D)),
            "w1": _w((lambda *s: torch.randn(*s, dtype=torch.bfloat16) * 0.2)(D, F) * (2.0 / D) ** 0.5),
            "w3": _w((lambda *s: torch.randn(*s, dtype=torch.bfloat16) * 0.2)(D, F) * (2.0 / D) ** 0.5),
            "w2": _w((lambda *s: torch.randn(*s, dtype=torch.bfloat16) * 0.2)(F, D) * (2.0 / F) ** 0.5),
        }
    _B_in = _B_setup()

    return {
        "A_q": _A_in["q"],
        "A_k": _A_in["k"],
        "A_v": _A_in["v"],
        "A_shift_k": _A_in["shift_k"],
        "A_ssm_k": _A_in["ssm_k"],
        "A_ssm_D": _A_in["ssm_D"],
        "B_x": _B_in["x"],
        "B_w1": _B_in["w1"],
        "B_w3": _B_in["w3"],
        "B_w2": _B_in["w2"],
    }

def reference(A_q, A_k, A_v, A_shift_k, A_ssm_k, A_ssm_D, B_x, B_w1, B_w3, B_w2):
    def _A_ref(q, k, v, shift_k, ssm_k, ssm_D):
        B, S, D = q.shape
        ks = shift_k.shape[-1]
        k_pad = _pad(k, ((0, 0), (ks - 1, 0), (0, 0)))
        k_shift = torch.zeros_like(k)
        for t in range(ks):
            k_shift = k_shift + k_pad[:, t:t + S, :] * shift_k[:, ks - 1 - t][None, None, :]
        kv = k_shift * v
        L = 2 * S
        kv_pad = _pad(kv, ((0, 0), (0, S), (0, 0)))
        kf_pad = _pad(ssm_k, ((0, 0), (0, S)))
        kv_f = (lambda x, axes=(-2,-1): torch.fft.rfft2(x.float(), dim=axes))(kv_pad[:, None, :, :], axes=(1, 2))
        kf_f = (lambda x, axes=(-2,-1): torch.fft.rfft2(x.float(), dim=axes))(kf_pad[:, None, :], axes=(1, 2))
        kf_f = (lambda x, *d: x.permute(*d))(kf_f, 1, 2, 0)
        y_f = kv_f * kf_f[None, :, :, :]
        y = (lambda x, s, axes=(-2,-1): torch.fft.irfft2(x, s=s, dim=axes).to(torch.bfloat16))(y_f, (1, L), axes=(1, 2))[:, 0, :S, :]
        y = y + kv * ssm_D[None, None, :]
        return q * y

    def _B_ref(x, w1, w3, w2):
        gate = torch.einsum("bsd,df->bsf", x, w1)
        up = torch.einsum("bsd,df->bsf", x, w3)
        h = _silu(gate) * up
        out = torch.einsum("bsf,fd->bsd", h, w2)
        return out

    x = A_q
    h = x + _A_ref(_layernorm(x, axis=-1), A_k, A_v, A_shift_k, A_ssm_k, A_ssm_D)
    h2 = h + _B_ref(_layernorm(h, axis=-1), B_w1, B_w3, B_w2)
    return h2
```

```python
import re

TRANS = ("v_exp_f32", "v_log_f32", "v_rcp_f32", "v_rsq_f32", "v_sqrt_f32", "v_sin_f32", "v_cos_f32")


def _regs(tok):
    tok = tok.strip()
    neg = tok.lstrip("-")
    m = re.fullmatch(r"abs\((.*)\)", neg)
    if m:
        neg = m.group(1)
    neg = neg.strip("|")
    m = re.fullmatch(r"([vas])(\d+)", neg)
    if m:
        return {m.group(1) + m.group(2)}
    m = re.fullmatch(r"([vas])\[(\d+):(\d+)\]", neg)
    if m:
        return {m.group(1) + str(i) for i in range(int(m.group(2)), int(m.group(3)) + 1)}
    if neg in ("vcc", "vcc_lo", "vcc_hi"):
        return {"vcc"}
    if neg in ("exec", "exec_lo", "exec_hi"):
        return {"exec"}
    if neg == "m0":
        return {"m0"}
    return set()


def _split_ops(rest):
    out, depth, cur = [], 0, ""
    for ch in rest:
        if ch == "[":
            depth += 1
        if ch == "]":
            depth -= 1
        if ch == "," and depth == 0:
            out.append(cur.strip())
            cur = ""
        else:
            cur += ch
    if cur.strip():
        out.append(cur.strip())
    return out


class Ins:
    def __init__(self, text):
        self.text = text
        body = text.split(";")[0].strip()
        parts = body.split(None, 1)
        self.op = parts[0]
        rest = parts[1] if len(parts) > 1 else ""
        ops = _split_ops(rest)
        self.mods = ""
        if ops:
            last = ops[-1].split(None, 1)
            if len(last) > 1:
                ops[-1] = last[0]
                self.mods = last[1]
        self.ops = ops
        self.body = body
        op = self.op
        self.kind = "other"
        self.w, self.r = set(), set()
        self.srcA = self.srcB = self.srcC = set()
        R = [_regs(o) for o in ops]
        if op.startswith("v_mfma"):
            self.kind = "mfma"
            self.w = R[0]
            self.srcA, self.srcB, self.srcC = R[1], R[2], R[3]
            self.r = R[1] | R[2] | R[3]
            self.passes = 8 if "32x32" in op else 4
        elif op.startswith("v_"):
            self.kind = "valu"
            base = op.replace("_e32", "").replace("_e64", "").replace("_dpp", "")
            self.base = base
            if base.startswith("v_permlane"):
                self.w = R[0] | R[1]
                self.r = R[0] | R[1]
            elif base in ("v_add_co_u32", "v_sub_co_u32", "v_addc_co_u32", "v_subb_co_u32"):
                self.w = R[0] | R[1]
                self.r = set().union(*R[2:])
            else:
                self.w = R[0]
                self.r = set().union(*R[1:]) if len(R) > 1 else set()
                if base.startswith(("v_fmac", "v_dot2c", "v_pk_fmac")) or "dpp" in op or "row_" in self.mods or "quad_perm" in self.mods:
                    self.r |= R[0]
                if base == "v_cndmask_b32" and len(ops) == 3:
                    self.r |= {"vcc"}
            self.dpp = ("dpp" in op) or ("row_" in self.mods) or ("quad_perm" in self.mods)
            self.trans = base in TRANS
            self.dot = base.startswith("v_dot")
        elif op.startswith("ds_"):
            self.kind = "ds"
            if op.startswith(("ds_read", "ds_bpermute", "ds_permute", "ds_swizzle")):
                self.w = R[0]
                self.r = set().union(*R[1:])
            else:
                self.r = set().union(*R)
        elif op.startswith("buffer_") or op.startswith("global_"):
            self.kind = "vmem"
            self.lds = bool(re.search(r"(^|\s)lds(\s|$)", self.mods)) or "_lds_" in op
            if "load" in op and not self.lds:
                self.w = R[0]
                self.r = set().union(*R[1:])
            elif "atomic" in op and "sc0" in self.mods:
                self.w = R[0]
                self.r = set().union(*R)
            else:
                self.r = set().union(*R) if R else set()
            if self.lds:
                self.r |= {"m0"}
            self.wide_store = ("store" in op) and ("x4" in op or "x3" in op)
            if self.wide_store:
                self.sdata = R[0] if op.startswith("buffer_") else R[1]
        elif op.startswith(("s_load", "s_buffer_load", "s_memtime", "s_memrealtime")):
            self.kind = "smem"
            self.w = R[0]
            self.r = set().union(*R[1:]) if len(R) > 1 else set()
        elif op.startswith("s_"):
            self.kind = "salu"
            if op.startswith(("s_cmp", "s_cbranch", "s_branch", "s_waitcnt", "s_nop", "s_barrier", "s_endpgm", "s_sleep", "s_setprio")):
                self.r = set().union(*R) if R else set()
            else:
                self.w = R[0] if R else set()
                self.r = set().union(*R[1:]) if len(R) > 1 else set()
                if "saveexec" in op:
                    self.w |= {"exec"}

    def states(self):
        if self.op == "s_nop":
            return int(self.ops[0], 0) + 1
        return 1


def _need(p, c):
    n = 0
    vw = {x for x in p.w if x[0] in "va" and x != "vcc"}
    sw = {x for x in p.w if x[0] == "s" or x == "vcc"}
    if p.kind == "valu":
        if c.kind == "mfma" and vw & c.r:
            n = max(n, 3 if p.dot else 2)
        if c.kind == "valu":
            if p.trans and not c.trans and vw & c.r:
                n = max(n, 1)
            if p.trans and c.trans and vw & c.r:
                n = max(n, 1)
            if c.dpp and vw & c.r:
                n = max(n, 2)
            if c.base.startswith(("v_readlane", "v_readfirstlane")) and vw & c.r:
                n = max(n, 1)
            if c.base.startswith("v_permlane") and vw & c.r:
                n = max(n, 2)
            if sw & c.r:
                n = max(n, 4 if c.base.startswith(("v_readlane", "v_writelane")) else 2)
            if p.dot and vw & (c.r | c.w):
                same_c = c.base == p.base and not (vw & (_regs(c.ops[1]) | _regs(c.ops[2])))
                if not same_c:
                    n = max(n, 3)
        if c.kind in ("vmem", "ds") and p.dot and vw & c.r:
            n = max(n, 3)
        if c.kind == "vmem" and sw & c.r:
            n = max(n, 5)
        if c.kind in ("salu", "smem") and sw & c.r:
            n = max(n, 1)
    if p.kind == "mfma":
        big = {4: 8, 8: 12}[p.passes]
        if c.kind == "mfma":
            if p.w & (c.srcA | c.srcB):
                n = max(n, big)
            if p.w & c.srcC:
                if not (p.w == c.srcC and p.passes == c.passes):
                    n = max(n, {4: 6, 8: 10}[p.passes])
            elif p.w & c.w:
                n = max(n, big)
        elif c.kind == "valu":
            if p.w & (c.r | c.w):
                n = max(n, big)
            if p.srcC & c.w:
                n = max(n, {4: 3, 8: 7}[p.passes])
        elif c.kind in ("vmem", "ds"):
            if p.w & (c.r | c.w):
                n = max(n, big)
    if p.kind == "vmem" and getattr(p, "wide_store", False):
        if p.sdata & c.w:
            n = max(n, 2)
    if p.kind == "ds" and p.op in ("ds_write_b128", "ds_write_b96") and (p.r & c.w):
        n = max(n, 2)
    if p.kind == "salu" and "m0" in p.w and c.kind == "vmem" and getattr(c, "lds", False):
        n = max(n, 1)
    return n


class Asm:
    def __init__(self):
        self.lines = []

    def __call__(self, text):
        for ln in text.split("\n"):
            ln = ln.strip()
            if ln:
                self.lines.append(ln)

    def comment(self, t):
        self.lines.append("; " + t)

    def finish(self, check_waits=True):
        out, hist = [], []
        vm, lg = [], []
        smem_pending = set()
        errors = []
        for ln in self.lines:
            body = ln.split(";")[0].strip()
            if not body or body.startswith("."):
                out.append(ln)
                continue
            if body.endswith(":"):
                out.append(ln)
                if "reset" in ln:
                    vm, lg, smem_pending = [], [], set()
                continue
            c = Ins(ln)
            need = 0
            dist = 0
            for p in reversed(hist):
                k = _need(p, c)
                if k - dist > need:
                    need = k - dist
                dist += p.states()
                if dist >= 20:
                    break
            while need > 0:
                k = min(need, 16)
                nop = Ins("s_nop %d" % (k - 1))
                out.append("s_nop %d" % (k - 1))
                hist.append(nop)
                need -= k
            if check_waits:
                touched = c.r | c.w
                for q, nm in ((vm, "vmcnt"), (lg, "lgkmcnt")):
                    for dst, txt in q:
                        if dst & touched:
                            errors.append("%s pending (%s) touched by: %s" % (nm, txt, ln))
                if smem_pending & touched:
                    errors.append("smem pending touched by: %s" % ln)
                if c.kind == "vmem":
                    vm.append((set(c.w), ln))
                    if len(vm) > 63:
                        errors.append("vmcnt overflow (>63 outstanding) at: %s" % ln)
                elif c.kind == "ds":
                    lg.append((set(c.w), ln))
                elif c.kind == "smem":
                    smem_pending |= c.w
                elif c.op == "s_waitcnt":
                    m = re.search(r"vmcnt\((\d+)\)", c.body)
                    if m:
                        n = int(m.group(1))
                        assert n <= 63
                        vm = vm[len(vm) - n:] if n and len(vm) > n else (vm if n else [])
                    m = re.search(r"lgkmcnt\((\d+)\)", c.body)
                    if m:
                        n = int(m.group(1))
                        assert n <= 15
                        if smem_pending and n:
                            errors.append("counted lgkmcnt with smem pending: %s" % ln)
                        lg = lg[len(lg) - n:] if n and len(lg) > n else (lg if n else [])
                        if n == 0:
                            smem_pending = set()
                elif c.op == "s_endpgm":
                    vm, lg, smem_pending = [], [], set()
            out.append(ln)
            hist.append(c)
            if len(hist) > 40:
                hist = hist[-40:]
        if errors:
            raise RuntimeError("\n".join(errors[:30]))
        return "\n".join(("" if (l.endswith(":") or l.startswith((".", ";"))) else "    ") + l for l in out)


def vr(b, n=1):
    return "v%d" % b if n == 1 else "v[%d:%d]" % (b, b + n - 1)


def ar(b, n=1):
    return "a%d" % b if n == 1 else "a[%d:%d]" % (b, b + n - 1)


def sr(b, n=1):
    return "s%d" % b if n == 1 else "s[%d:%d]" % (b, b + n - 1)
```

```python
import sys
from asmlib import Asm, vr, ar, sr

NAME = "sequential_preLN__ssm_conv_h3__glu_gated_swiglu__prompt"
MB = 1 << 20
WS_KVT, WS_XT, WS_HT = 0, 2 * MB, 4 * MB
WS_ST1 = 6 * MB
WS_CS = 6 * MB + 16384
WS_HH = 8 * MB
WS_SIZE = 16 * MB
EPS_BITS = 0x3727C5AC
INV512 = 0x3B000000
LOG2E_NEG = 0xBFB8AA3B


class Vm:
    def __init__(self, a):
        self.a, self.n, self.tags = a, 0, {}

    def issue(self, text, tag=None):
        self.a(text)
        self.n += 1
        if tag is not None:
            self.tags[tag] = self.n

    def wait(self, tag, extra=""):
        k = self.n - self.tags[tag]
        self.a("s_waitcnt vmcnt(%d)%s" % (min(k, 63), extra))


def srd(a, d, p, size):
    a("s_mov_b32 s%d, s%d" % (d, p))
    a("s_and_b32 s%d, s%d, 0xffff" % (d + 1, p + 1))
    a("s_mov_b32 s%d, 0x%x" % (d + 2, size))
    a("s_mov_b32 s%d, 0x20000" % (d + 3))


def header(a, name):
    a(".globl %s" % name)
    a(".p2align 8")
    a(".type %s,@function" % name)
    a("%s:" % name)


def descriptor(name, vgpr, sgpr, accum=None):
    accum = accum or ((vgpr + 3) // 4 * 4)
    return """.amdhsa_kernel %s
  .amdhsa_next_free_vgpr %d
  .amdhsa_next_free_sgpr %d
  .amdhsa_accum_offset %d
  .amdhsa_group_segment_fixed_size 0
  .amdhsa_kernarg_size 104
  .amdhsa_user_sgpr_count 2
  .amdhsa_user_sgpr_kernarg_segment_ptr 1
  .amdhsa_system_sgpr_workgroup_id_x 1
  .amdhsa_float_denorm_mode_32 3
.end_amdhsa_kernel
""" % (name, vgpr, sgpr, accum)


def wave_sum(a, regs):
    for mod in ("quad_perm:[1,0,3,2] row_mask:0xf bank_mask:0xf", "quad_perm:[2,3,0,1] row_mask:0xf bank_mask:0xf",
                "row_half_mirror row_mask:0xf bank_mask:0xf", "row_mirror row_mask:0xf bank_mask:0xf",
                "row_bcast:15 row_mask:0xa bank_mask:0xf", "row_bcast:31 row_mask:0xc bank_mask:0xf"):
        for r in regs:
            a("v_add_f32_dpp v%d, v%d, v%d %s" % (r, r, r, mod))


def kernel_a():
    a = Asm()
    vm = Vm(a)
    name = "ka_kernel"
    header(a, name)
    a("s_cmp_ge_u32 s2, 256")
    a("s_cbranch_scc1 ka_done")
    a("s_load_dwordx8 s[4:11], s[0:1], 0")
    a("s_load_dwordx2 s[32:33], s[0:1], 96")
    a("s_and_b32 s34, s2, 7")
    a("s_lshr_b32 s35, s2, 3")
    a("s_lshl_b32 s36, s35, 16")
    a("s_lshl_b32 s37, s34, 7")
    a("s_add_u32 s36, s36, s37")
    a("v_lshrrev_b32 v1, 3, v0")
    a("v_and_b32 v2, 7, v0")
    a("v_lshlrev_b32 v3, 11, v1")
    a("v_lshl_add_u32 v3, v2, 4, v3")
    a("v_add_u32 v3, s36, v3")
    a("v_subrev_u32 v4, 3072, v3")
    a("v_subrev_u32 v5, 2048, v3")
    a("v_subrev_u32 v6, 1024, v3")
    a("s_lshl_b32 s37, s34, 9")
    a("v_lshlrev_b32 v7, 6, v2")
    a("v_add_u32 v7, s37, v7")
    a("v_lshrrev_b32 v68, 6, v0")
    a("v_and_b32 v69, 63, v0")
    a("v_lshlrev_b32 v70, 11, v68")
    a("v_lshl_add_u32 v70, v69, 4, v70")
    a("s_lshl_b32 s37, s2, 13")
    a("v_add_u32 v70, s37, v70")
    a("s_mov_b32 s38, 0xffff0000")
    a("s_waitcnt lgkmcnt(0)")
    srd(a, 12, 4, 2 * MB)
    srd(a, 16, 6, 2 * MB)
    srd(a, 20, 8, 2 * MB)
    srd(a, 24, 10, 4096)
    srd(a, 28, 32, WS_SIZE)
    K, V, X, SH, ST = 8, 28, 36, 44, 60
    for i, vo in enumerate((4, 5, 6)):
        vm.issue("buffer_load_dwordx4 %s, v%d, s[16:19], 0 offen" % (vr(K + 4 * i, 4), vo))
    vm.issue("buffer_load_dwordx4 %s, v3, s[16:19], 0 offen" % vr(K + 12, 4))
    vm.issue("buffer_load_dwordx4 %s, v3, s[16:19], 0 offen offset:1024" % vr(K + 16, 4), "k")
    for i in range(4):
        vm.issue("buffer_load_dwordx4 %s, v7, s[24:27], 0 offen offset:%d" % (vr(SH + 4 * i, 4), 16 * i), "sh")
    for i in range(2):
        vm.issue("buffer_load_dwordx4 %s, v3, s[20:23], 0 offen offset:%d" % (vr(V + 4 * i, 4), 1024 * i), "v")
    for i in range(2):
        vm.issue("buffer_load_dwordx4 %s, v3, s[12:15], 0 offen offset:%d" % (vr(X + 4 * i, 4), 1024 * i), "x")
    for i in range(2):
        vm.issue("buffer_load_dwordx4 %s, v70, s[12:15], 0 offen offset:%d" % (vr(ST + 4 * i, 4), 1024 * i), "st")
    a("v_lshlrev_b32 v71, 1, v1")
    a("v_sub_u32 v72, 62, v71")
    a("v_mul_u32_u24 v72, 144, v72")
    a("v_lshl_add_u32 v72, v2, 4, v72")
    a("v_mul_u32_u24 v73, 144, v71")
    a("v_lshl_add_u32 v73, v2, 4, v73")
    a("v_lshrrev_b32 v74, 4, v69")
    a("v_and_b32 v75, 15, v69")
    a("v_lshrrev_b32 v76, 2, v75")
    a("v_lshl_add_u32 v76, v74, 3, v76")
    a("v_mul_u32_u24 v76, 144, v76")
    a("v_and_b32 v77, 3, v75")
    a("v_lshl_add_u32 v76, v77, 3, v76")
    a("v_lshl_add_u32 v76, v68, 5, v76")
    a("v_lshl_add_u32 v78, v68, 4, v75")
    a("s_lshl_b32 s37, s34, 6")
    a("v_add_u32 v78, s37, v78")
    a("v_lshlrev_b32 v78, 12, v78")
    a("v_lshl_add_u32 v78, v74, 4, v78")
    a("s_lshl_b32 s39, s35, 7")
    a("s_sub_u32 s40, %d, s39" % (WS_KVT + 3968))
    a("s_add_u32 s41, s39, %d" % WS_XT)
    KU, WU, VU = 80, 120, 152
    vm.wait("k")
    for i in range(20):
        a("v_lshlrev_b32 v%d, 16, v%d" % (KU + 2 * i, K + i))
        a("v_and_b32 v%d, s38, v%d" % (KU + 2 * i + 1, K + i))
    vm.wait("sh")
    for e in range(8):
        for j in range(4):
            src = SH + 2 * e + (j >> 1)
            if j & 1:
                a("v_and_b32 v%d, s38, v%d" % (WU + 8 * j + e, src))
            else:
                a("v_lshlrev_b32 v%d, 16, v%d" % (WU + 8 * j + e, src))
    vm.wait("v")
    for i in range(8):
        a("v_lshlrev_b32 v%d, 16, v%d" % (VU + 2 * i, V + i))
        a("v_and_b32 v%d, s38, v%d" % (VU + 2 * i + 1, V + i))
    ACC, OUT = 168, 184
    for i in range(2):
        for d in range(4):
            t = ACC + 8 * i + 2 * d
            a("v_pk_mul_f32 %s, %s, %s" % (vr(t, 2), vr(KU + 8 * i + 2 * d, 2), vr(WU + 24 + 2 * d, 2)))
        for j in (2, 1, 0):
            for d in range(4):
                t = ACC + 8 * i + 2 * d
                a("v_pk_fma_f32 %s, %s, %s, %s" % (vr(t, 2), vr(KU + 8 * (i + 3 - j) + 2 * d, 2), vr(WU + 8 * j + 2 * d, 2), vr(t, 2)))
        for d in range(4):
            t = ACC + 8 * i + 2 * d
            a("v_pk_mul_f32 %s, %s, %s" % (vr(t, 2), vr(t, 2), vr(VU + 8 * i + 2 * d, 2)))
        for d in range(4):
            t = ACC + 8 * i + 2 * d
            a("v_cvt_pk_bf16_f32 v%d, v%d, v%d" % (OUT + 4 * i + d, t, t + 1))
    a("ds_write_b128 v72, %s offset:144" % vr(OUT, 4))
    a("ds_write_b128 v72, %s" % vr(OUT + 4, 4))
    vm.wait("x")
    a("ds_write_b128 v73, %s offset:9216" % vr(X, 4))
    a("ds_write_b128 v73, %s offset:%d" % (vr(X + 4, 4), 9216 + 144))
    a("s_waitcnt lgkmcnt(0)")
    a("s_barrier")
    T = 80
    for ten in range(2):
        for s in range(2):
            for hi in range(2):
                a("ds_read_b64_tr_b16 %s, v76 offset:%d" % (vr(T + 8 * ten + 4 * s + 2 * hi, 2), 9216 * ten + 144 * (32 * s + 4 * hi)))
    vm.wait("st")
    U = 100
    for i in range(8):
        a("v_lshlrev_b32 v%d, 16, v%d" % (U + 2 * i, ST + i))
        a("v_and_b32 v%d, s38, v%d" % (U + 2 * i + 1, ST + i))
    a("s_waitcnt lgkmcnt(0)")
    for ten in range(2):
        for s in range(2):
            vm.issue("buffer_store_dwordx4 %s, v78, s[28:31], s%d offen offset:%d" % (vr(T + 8 * ten + 4 * s, 4), 40 + ten, 64 * s))
    S0 = 120
    for r in range(2):
        a("v_add_f32 v%d, v%d, v%d" % (S0 + r, U + 8 * r, U + 8 * r + 1))
    for e in range(2, 8):
        for r in range(2):
            a("v_add_f32 v%d, v%d, v%d" % (S0 + r, S0 + r, U + 8 * r + e))
    wave_sum(a, [S0, S0 + 1])
    for r in range(2):
        a("v_mul_f32 v%d, 0x%x, v%d" % (S0 + r, INV512, S0 + r))
    for r in range(2):
        a("v_readlane_b32 s%d, v%d, 63" % (42 + r, S0 + r))
    for e in range(8):
        for r in range(2):
            a("v_subrev_f32 v%d, s%d, v%d" % (U + 8 * r + e, 42 + r, U + 8 * r + e))
    Q0 = 122
    for r in range(2):
        a("v_mul_f32 v%d, v%d, v%d" % (Q0 + r, U + 8 * r, U + 8 * r))
    for e in range(1, 8):
        for r in range(2):
            a("v_fmac_f32 v%d, v%d, v%d" % (Q0 + r, U + 8 * r + e, U + 8 * r + e))
    wave_sum(a, [Q0, Q0 + 1])
    a("s_mov_b32 s44, 0x%x" % INV512)
    a("v_mov_b32 v130, 0x%x" % EPS_BITS)
    R = 124
    for r in range(2):
        a("v_fma_f32 v%d, v%d, s44, v130" % (Q0 + r, Q0 + r))
    for r in range(2):
        a("v_rsq_f32 v%d, v%d" % (R + 2 * r, Q0 + r))
    for r in range(2):
        a("v_mul_f32 v%d, v%d, -v%d" % (R + 2 * r + 1, R + 2 * r, S0 + r))
    a("s_lshl_b32 s37, s2, 6")
    a("s_add_u32 s37, s37, %d" % WS_ST1)
    a("v_lshlrev_b32 v79, 4, v68")
    a("s_mov_b32 exec_lo, 0")
    a("s_mov_b32 exec_hi, 0x80000000")
    vm.issue("buffer_store_dwordx4 %s, v79, s[28:31], s37 offen" % vr(R, 4))
    a("ka_done:")
    a("s_endpgm")
    return a.finish(), descriptor(name, 192, 48), (name, 256, 256, 18432)


def kernel_b():
    a = Asm()
    vm = Vm(a)
    name = "kb_kernel"
    header(a, name)
    U_STRIDE = 4608
    L_HEAD = 2 * U_STRIDE
    L_X = L_HEAD + 4 * 160
    LDS = L_X + 4 * 4096
    a("s_cmp_ge_u32 s2, 256")
    a("s_cbranch_scc1 kb_done")
    a("s_load_dwordx4 s[4:7], s[0:1], 32")
    a("s_load_dwordx4 s[8:11], s[0:1], 56")
    a("s_load_dwordx2 s[32:33], s[0:1], 96")
    a("v_lshrrev_b32 v1, 6, v0")
    a("v_and_b32 v2, 63, v0")
    a("v_readfirstlane_b32 s3, v1")
    a("s_cmp_eq_u32 s3, 4")
    a("s_cbranch_scc1 kb_helper")
    a("s_and_b32 s34, s2, 7")
    a("s_lshr_b32 s35, s2, 3")
    a("s_lshl_b32 s34, s34, 6")
    a("s_lshl_b32 s35, s35, 1")
    a("s_add_u32 s34, s34, s35")
    a("s_lshr_b32 s36, s3, 1")
    a("s_and_b32 s37, s3, 1")
    a("s_add_u32 s38, s34, s36")
    a("s_lshl_b32 s39, s38, 12")
    a("s_mul_i32 s40, s36, %d" % U_STRIDE)
    a("s_lshl_b32 s41, s34, 1")
    a("v_and_b32 v3, 15, v2")
    a("v_lshrrev_b32 v4, 4, v2")
    a("s_waitcnt lgkmcnt(0)")
    a("s_load_dword s42, s[6:7], s41")
    srd(a, 12, 4, 2 * MB)
    srd(a, 28, 32, WS_SIZE)
    a("v_lshlrev_b32 v5, 4, v2")
    a("v_add_u32 v6, s39, v5")
    a("v_mov_b32 v7, 0x80000000")
    a("v_cmp_gt_u32 vcc, 8, v2")
    a("v_cndmask_b32 v6, v7, v6, vcc")
    vm.issue("buffer_load_dwordx4 v[8:11], v6, s[12:15], 0 offen", "head")
    a("v_add_u32 v12, 32, v5")
    a("v_subrev_u32 v13, 128, v5")
    a("v_cndmask_b32 v12, v13, v12, vcc")
    a("s_mul_i32 s43, s3, 160")
    a("s_add_u32 s43, s43, %d" % L_HEAD)
    a("v_add_u32 v12, s43, v12")
    a("s_lshl_b32 s44, s37, 11")
    a("s_add_u32 s45, s40, s44")
    a("s_mov_b32 m0, s45")
    a("s_add_u32 s46, s39, s44")
    vm.issue("buffer_load_dwordx4 v5, s[28:31], s46 offen lds")
    vm.issue("buffer_load_dwordx4 v5, s[28:31], s46 offen offset:1024 lds", "u")
    ACC, AR, BR = 16, 48, 112
    a("v_lshl_add_u32 v14, v4, 3, v3")
    a("v_lshlrev_b32 v14, 1, v14")
    a("s_lshl_b32 s47, s37, 6")
    a("s_add_u32 s48, s39, s47")
    a("s_add_u32 s48, s48, 98")
    a("v_add_u32 v15, s48, v14")
    for s in range(1, 16):
        vm.issue("buffer_load_dwordx4 %s, v15, s[12:15], 0 offen offset:%d" % (vr(AR + 4 * s, 4), 128 * (s - 1)), ("A", s))
    for i in range(4):
        a("v_mov_b32 v%d, 0" % (240 + i))
    a("v_and_b32 v244, 31, v2")
    a("v_lshlrev_b32 v244, 4, v244")
    a("v_add_u32 v244, s40, v244")
    a("ds_write_b128 v244, v[240:243] offset:4096")
    a("s_add_u32 s49, s43, s47")
    a("s_add_u32 s49, s49, 2")
    a("v_add_u32 v245, s49, v14")
    a("v_lshlrev_b32 v246, 4, v4")
    a("v_lshlrev_b32 v247, 5, v3")
    a("v_sub_u32 v246, v246, v247")
    a("s_add_u32 s50, s40, s47")
    a("s_add_u32 s50, s50, 480")
    a("v_add_u32 v246, s50, v246")
    a("v_lshl_add_u32 v247, v4, 3, v247")
    a("s_add_u32 s51, s39, s44")
    a("v_add_u32 v248, s51, v247")
    a("s_sub_u32 s52, s40, s44")
    a("s_add_u32 s52, s52, %d" % (4088 - 1536))
    a("v_sub_u32 v249, s52, v247")
    a("v_lshlrev_b32 v250, 2, v247")
    a("s_lshl_b32 s53, s37, 13")
    a("s_add_u32 s53, s53, %d" % WS_ST1)
    a("s_add_u32 s54, s53, 4096")
    a("s_mov_b32 s55, %d" % WS_XT)
    a("s_mov_b32 s56, %d" % WS_HT)
    a("s_mov_b32 s57, 0xffff0000")
    a("s_lshl_b32 s58, s3, 12")
    a("s_add_u32 s58, s58, %d" % L_X)
    a("v_add_u32 v251, s58, v5")
    a("s_xor_b32 s59, s3, 1")
    a("s_lshl_b32 s59, s59, 12")
    a("s_add_u32 s59, s59, %d" % L_X)
    a("v_add_u32 v252, s59, v5")
    vm.wait("head")
    a("s_mov_b64 exec, 0x3ff")
    a("ds_write_b128 v12, v[8:11]")
    a("s_mov_b64 exec, -1")
    vm.wait("u", " lgkmcnt(0)")
    a("s_barrier")
    a("s_lshl_b32 s60, s42, 16")
    a("s_and_b32 s61, s42, 0xffff0000")
    a("s_cmp_eq_u32 s36, 0")
    a("s_cselect_b32 s60, s60, s61")
    a("ds_read_b128 %s, v245" % vr(AR, 4))
    order = []
    for s in range(4):
        for i in range(7, -1, -1):
            order.append(4 * i - s + 3)
    lg_issued = 1
    lg_pos = {}

    def issue_b(bi):
        nonlocal lg_issued
        a("ds_read_b128 %s, v246 offset:%d" % (vr(BR + 4 * bi, 4), 128 * (31 - bi)))
        lg_issued += 1
        lg_pos[bi] = lg_issued

    for bi in order[:12]:
        issue_b(bi)
    nxt = 12
    XR, SR = BR + 4 * 22, BR + 4 * 24
    started = set()
    lg_done = 0
    for s in range(32):
        if s >= 1:
            vm.wait(("A", s))
        for i in range(7, -1, -1):
            bi = 4 * i - s + 3
            if bi < 0:
                continue
            if lg_pos[bi] > lg_done:
                a("s_waitcnt lgkmcnt(%d)" % (lg_issued - lg_pos[bi]))
                lg_done = lg_pos[bi]
            c = vr(ACC + 4 * i, 4) if i in started else "0"
            started.add(i)
            a("v_mfma_f32_16x16x32_bf16 %s, %s, %s, %s" % (vr(ACC + 4 * i, 4), vr(AR + 4 * (s % 16), 4), vr(BR + 4 * bi, 4), c))
            if nxt < 32:
                issue_b(order[nxt])
                nxt += 1
        if s + 16 < 32:
            vm.issue("buffer_load_dwordx4 %s, v15, s[12:15], 0 offen offset:%d" % (vr(AR + 4 * (s % 16), 4), 128 * (s + 15)), ("A", s + 16))
        if s == 9:
            for q in range(4):
                vm.issue("buffer_load_dwordx2 %s, v248, s[28:31], s55 offen offset:%d" % (vr(XR + 2 * q, 2), 512 * q))
            for q in range(4):
                for hf in range(2):
                    vm.issue("buffer_load_dwordx4 %s, v250, s[28:31], s%d offen offset:%d" % (vr(SR + 8 * q + 4 * hf, 4), 53 + (q >> 1), 2048 * (q & 1) + 16 * hf), "ep")
    KV, RX, Y = AR, AR + 8, AR + 24
    for q in range(4):
        a("ds_read_b64 %s, v249 offset:%d" % (vr(KV + 2 * q, 2), 512 * (3 - q)))
    a("s_nop 7")
    a("s_cmp_eq_u32 s37, 0")
    a("s_cbranch_scc0 kb_send_lo")
    for q in range(4):
        a("ds_write_b128 v251, %s offset:%d" % (vr(ACC + 16 + 4 * q, 4), 1024 * q))
    a("s_branch kb_sent")
    a("kb_send_lo:")
    for q in range(4):
        a("ds_write_b128 v251, %s offset:%d" % (vr(ACC + 4 * q, 4), 1024 * q))
    for k in range(16):
        a("v_mov_b32 v%d, v%d" % (ACC + k, ACC + 16 + k))
    a("kb_sent:")
    a("s_waitcnt lgkmcnt(0)")
    a("s_barrier")
    for q in range(4):
        a("ds_read_b128 %s, v252 offset:%d" % (vr(RX + 4 * q, 4), 1024 * q))
    vm.wait("ep")
    XU, KU, LN = BR, BR + 16, BR + 32
    for q in range(4):
        for d in range(2):
            a("v_lshlrev_b32 v%d, 16, v%d" % (XU + 4 * q + 2 * d, XR + 2 * q + d))
            a("v_and_b32 v%d, s57, v%d" % (XU + 4 * q + 2 * d + 1, XR + 2 * q + d))
            a("v_lshlrev_b32 v%d, 16, v%d" % (KU + 4 * q + 3 - 2 * d, KV + 2 * q + d))
            a("v_and_b32 v%d, s57, v%d" % (KU + 4 * q + 2 - 2 * d, KV + 2 * q + d))
        for e in range(4):
            a("v_fma_f32 v%d, v%d, v%d, v%d" % (LN + 4 * q + e, XU + 4 * q + e, SR + 8 * q + 2 * e, SR + 8 * q + 2 * e + 1))
    a("s_waitcnt lgkmcnt(0)")
    H = BR + 48
    for q in range(4):
        for e in range(4):
            a("v_add_f32 v%d, v%d, v%d" % (Y + 4 * q + e, ACC + 4 * q + e, RX + 4 * q + e))
        for e in range(4):
            a("v_fmac_f32 v%d, s60, v%d" % (Y + 4 * q + e, KU + 4 * q + e))
        for e in range(4):
            a("v_fmac_f32 v%d, v%d, v%d" % (XU + 4 * q + e, LN + 4 * q + e, Y + 4 * q + e))
        for d in range(2):
            a("v_cvt_pk_bf16_f32 v%d, v%d, v%d" % (H + 2 * q + d, XU + 4 * q + 2 * d, XU + 4 * q + 2 * d + 1))
        vm.issue("buffer_store_dwordx2 %s, v248, s[28:31], s56 offen offset:%d" % (vr(H + 2 * q, 2), 512 * q))
    a("s_endpgm")
    a("kb_helper: ; reset")
    a("s_waitcnt lgkmcnt(0)")
    a("s_cmp_ge_u32 s2, 224")
    a("s_cbranch_scc1 kb_done")
    a("s_cmp_ge_u32 s2, 112")
    a("s_cselect_b32 s4, s10, s8")
    a("s_cselect_b32 s5, s11, s9")
    a("s_cselect_b32 s6, 112, 0")
    a("s_cselect_b32 s7, 7168, 0")
    a("s_sub_u32 s6, s2, s6")
    srd(a, 12, 4, 512 * 3584)
    srd(a, 28, 32, WS_SIZE)
    a("v_and_b32 v3, 1, v2")
    a("v_lshrrev_b32 v4, 1, v2")
    a("v_mul_u32_u24 v4, 3584, v4")
    a("v_lshl_add_u32 v4, v3, 4, v4")
    a("s_lshl_b32 s34, s6, 5")
    vm2 = Vm(a)
    for j in range(16):
        vm2.issue("buffer_load_dwordx4 %s, v4, s[12:15], s34 offen" % vr(16 + 4 * j, 4), j)
        a("s_add_u32 s34, s34, %d" % (32 * 3584))
    a("s_barrier")
    a("s_mov_b32 s35, 0x3f80")
    a("s_mov_b32 s36, 0x3f800000")
    for e in range(8):
        a("v_mov_b32 v%d, 0" % (8 + e))
    for j in range(16):
        vm2.wait(j)
        for d in range(4):
            a("v_dot2_f32_bf16 v%d, v%d, s35, v%d" % (8 + 2 * d, 16 + 4 * j + d, 8 + 2 * d))
            a("v_dot2_f32_bf16 v%d, v%d, s36, v%d" % (9 + 2 * d, 16 + 4 * j + d, 9 + 2 * d))
    for mod in ("quad_perm:[2,3,0,1] row_mask:0xf bank_mask:0xf", "row_shr:4 row_mask:0xf bank_mask:0xf bound_ctrl:0",
                "row_shr:8 row_mask:0xf bank_mask:0xf bound_ctrl:0"):
        for e in range(8):
            a("v_add_f32_dpp v%d, v%d, v%d %s" % (8 + e, 8 + e, 8 + e, mod))
    for sw in ("v_permlane16_swap_b32", "v_permlane32_swap_b32"):
        for e in range(8):
            a("v_mov_b32 v%d, v%d" % (16 + e, 8 + e))
        for e in range(8):
            a("%s v%d, v%d" % (sw, 8 + e, 16 + e))
        for e in range(8):
            a("v_add_f32 v%d, v%d, v%d" % (8 + e, 8 + e, 16 + e))
    a("v_lshlrev_b32 v3, 5, v3")
    a("s_lshl_b32 s34, s6, 6")
    a("s_add_u32 s34, s34, s7")
    a("s_add_u32 s34, s34, %d" % WS_CS)
    a("s_mov_b64 exec, 0xc000")
    a("buffer_store_dwordx4 v[8:11], v3, s[28:31], s34 offen")
    a("buffer_store_dwordx4 v[12:15], v3, s[28:31], s34 offen offset:16")
    a("kb_done:")
    a("s_endpgm")
    return a.finish(), descriptor(name, 256, 64), (name, 256, 320, LDS)


def kernel_d():
    a = Asm()
    vm = Vm(a)
    name = "kd_kernel"
    header(a, name)
    UP_OFF, H_OFF, SLOT = 14464, 28800, 45184
    L_CS = 3 * SLOT
    LDS = L_CS + 1024
    a("s_cmp_ge_u32 s2, 256")
    a("s_cbranch_scc1 kd_done")
    a("s_load_dwordx4 s[8:11], s[0:1], 56")
    a("s_load_dwordx2 s[32:33], s[0:1], 96")
    a("v_lshrrev_b32 v1, 6, v0")
    a("v_and_b32 v2, 63, v0")
    a("v_readfirstlane_b32 s3, v1")
    a("s_lshr_b32 s34, s2, 3")
    a("s_and_b32 s35, s2, 6")
    a("s_lshl_b32 s35, s35, 1")
    a("s_lshr_b32 s36, s34, 3")
    a("s_add_u32 s35, s35, s36")
    a("s_and_b32 s36, s2, 1")
    a("s_lshl_b32 s36, s36, 3")
    a("s_and_b32 s37, s34, 7")
    a("s_add_u32 s36, s36, s37")
    a("s_lshr_b32 s38, s3, 1")
    a("s_and_b32 s39, s3, 1")
    a("s_mul_i32 s40, s39, 448")
    a("s_mul_i32 s41, s36, 224")
    a("s_movk_i32 s42, 4682")
    for u in range(7):
        a("v_add_u32 v11, s40, v2")
        if u:
            a("v_add_u32 v11, %d, v11" % (64 * u))
        a("v_mul_u32_u24 v12, s42, v11")
        a("v_lshrrev_b32 v12, 16, v12")
        a("v_mul_u32_u24 v13, 14, v12")
        a("v_sub_u32 v13, v11, v13")
        a("v_mul_u32_u24 v12, 3584, v12")
        a("v_lshl_add_u32 v12, v13, 4, v12")
        a("v_add_u32 v%d, s41, v12" % (4 + u))
    a("v_lshrrev_b32 v11, 4, v2")
    a("v_and_b32 v12, 15, v2")
    a("v_lshlrev_b32 v13, 2, v11")
    a("v_xor_b32 v13, v13, v12")
    a("v_lshlrev_b32 v13, 4, v13")
    a("v_lshl_add_u32 v14, v11, 12, v13")
    a("s_lshl_b32 s43, s3, 16")
    a("s_lshl_b32 s44, s35, 8")
    a("s_add_u32 s43, s43, s44")
    a("s_add_u32 s43, s43, %d" % WS_HT)
    a("s_mul_i32 s45, s38, %d" % UP_OFF)
    a("s_mul_i32 s46, s39, 7168")
    a("s_add_u32 s45, s45, s46")
    a("s_lshl_b32 s46, s3, 12")
    a("s_add_u32 s46, s46, %d" % H_OFF)
    a("s_waitcnt lgkmcnt(0)")
    a("s_cmp_eq_u32 s38, 0")
    a("s_cselect_b32 s4, s8, s10")
    a("s_cselect_b32 s5, s9, s11")
    srd(a, 12, 4, 512 * 3584)
    srd(a, 28, 32, WS_SIZE)

    def dma_ops(s):
        slot = (s % 3) * SLOT
        ops = []
        for u in range(4):
            ops.append(("s_add_u32 m0, s46, %d" % (slot + 1024 * u), "s_add_u32 s47, s43, %d" % (262144 * s + 16384 * u),
                        "buffer_load_dwordx4 v14, s[28:31], s47 offen lds"))
        for u in range(7):
            ops.append(("s_add_u32 m0, s45, %d" % (slot + 1024 * u), "s_mov_b32 s47, %d" % (229376 * s),
                        "buffer_load_dwordx4 v%d, s[12:15], s47 offen lds" % (4 + u)))
        return ops

    def emit_dma(op, tag):
        a(op[0])
        a(op[1])
        vm.issue(op[2], tag)

    for s in range(2):
        for op in dma_ops(s):
            emit_dma(op, ("st", s))
        if s == 0:
            a("v_lshlrev_b32 v15, 4, v2")
            a("v_mov_b32 v16, 0x80000000")
            a("v_cmp_gt_u32 vcc, 28, v2")
            a("v_cndmask_b32 v16, v16, v15, vcc")
            a("s_mul_i32 s48, s39, 7168")
            a("s_mul_i32 s49, s36, 448")
            a("s_add_u32 s48, s48, s49")
            a("s_add_u32 s48, s48, %d" % WS_CS)
            a("s_lshl_b32 s49, s39, 9")
            a("s_add_u32 m0, s49, %d" % L_CS)
            a("s_mov_b32 exec_hi, 0")
            vm.issue("buffer_load_dwordx4 v16, s[28:31], s48 offen lds", ("st", 0))
            a("s_mov_b64 exec, -1")
    a("v_and_b32 v17, 1, v11")
    a("v_lshrrev_b32 v18, 1, v11")
    a("v_lshrrev_b32 v19, 2, v12")
    a("v_lshl_add_u32 v20, v18, 3, v19")
    a("v_and_b32 v21, 3, v12")
    a("v_and_b32 v22, 1, v12")
    a("v_lshrrev_b32 v23, 1, v21")
    a("v_lshl_add_u32 v24, v22, 1, v23")
    a("v_mul_u32_u24 v25, 224, v20")
    a("v_lshl_add_u32 v25, v24, 3, v25")
    a("v_mul_u32_u24 v26, %d, v17" % UP_OFF)
    a("v_add_u32 v25, v25, v26")
    a("s_lshl_b32 s49, s3, 2")
    a("v_lshl_add_u32 v26, v17, 1, v23")
    a("v_add_u32 v26, s49, v26")
    a("v_lshlrev_b32 v27, 2, v19")
    a("v_xor_b32 v26, v26, v27")
    a("v_lshlrev_b32 v26, 4, v26")
    a("v_lshl_add_u32 v26, v22, 3, v26")
    a("v_lshl_add_u32 v26, v20, 8, v26")
    a("v_add_u32 v26, %d, v26" % H_OFF)
    VA, VB = 28, 31
    for k in range(3):
        a("v_add_u32 v%d, %d, v25" % (VA + k, k * SLOT))
        a("v_add_u32 v%d, %d, v26" % (VB + k, k * SLOT))
    a("v_lshrrev_b32 v34, 5, v2")
    a("v_lshlrev_b32 v34, 5, v34")
    a("v_add_u32 v34, %d, v34" % L_CS)
    S1, S2 = 36, 38
    for k in range(4):
        a("v_mov_b32 v%d, 0" % (S1 + k))
    a("s_mov_b32 s50, 0x3f803f80")
    ACC, FA, FB = 40, 152, 208

    def reads(step):
        s, ks = divmod(step, 4)
        buf = step & 1
        out = []
        for hi in range(2):
            out.append("ds_read_b64_tr_b16 %s, v%d offset:%d" % (vr(FB + 4 * buf + 2 * hi, 2), VB + s % 3, 4096 * ks + 1024 * hi))
        for blk in range(7):
            for hi in range(2):
                out.append("ds_read_b64_tr_b16 %s, v%d offset:%d" % (vr(FA + 28 * buf + 4 * blk + 2 * hi, 2), VA + s % 3, 3584 * ks + 896 * hi + 32 * blk))
        return out

    vm.wait(("st", 0))
    a("s_barrier")
    pend_dma = list(dma_ops(2))
    pend_tag = ("st", 2)
    for r in reads(0):
        a(r)
    for step in range(32):
        s, ks = divmod(step, 4)
        buf = step & 1
        nxt = []
        if step + 1 < 32:
            if ks == 3:
                vm.wait(("st", s + 1), " lgkmcnt(0)")
                a("s_barrier")
                if s + 3 < 8:
                    pend_dma = list(dma_ops(s + 3))
                    pend_tag = ("st", s + 3)
            nxt = reads(step + 1)
        if ks != 3 or step == 31:
            a("s_waitcnt lgkmcnt(0)")
        fill = []
        for d in range(4):
            fill.append("v_dot2_f32_bf16 v%d, v%d, s50, v%d" % (S1 + (d & 1), FB + 4 * buf + d, S1 + (d & 1)))
            fill.append("v_dot2_f32_bf16 v%d, v%d, v%d, v%d" % (S2 + (d & 1), FB + 4 * buf + d, FB + 4 * buf + d, S2 + (d & 1)))
        for blk in range(7):
            c = vr(ACC + 16 * blk, 16) if step else "0"
            a("v_mfma_f32_32x32x16_bf16 %s, %s, %s, %s" % (vr(ACC + 16 * blk, 16), vr(FA + 28 * buf + 4 * blk, 4), vr(FB + 4 * buf, 4), c))
            for _ in range(3 if blk < 2 else 2):
                if nxt:
                    a(nxt.pop(0))
            if fill:
                a(fill.pop(0))
            if blk == 6 and fill:
                a(fill.pop(0))
            if pend_dma and (blk & 1) == 0:
                emit_dma(pend_dma.pop(0), pend_tag)
        assert not nxt and not fill
    assert not pend_dma
    a("v_add_f32 v36, v36, v37")
    a("v_add_f32 v38, v38, v39")
    a("v_mov_b32 v37, v36")
    a("v_mov_b32 v39, v38")
    a("v_permlane32_swap_b32 v36, v37")
    a("v_permlane32_swap_b32 v38, v39")
    a("v_add_f32 v36, v36, v37")
    a("v_add_f32 v38, v38, v39")
    a("v_mul_f32 v36, 0x%x, v36" % INV512)
    a("v_mul_f32 v38, 0x%x, v38" % INV512)
    a("v_fma_f32 v38, -v36, v36, v38")
    a("v_max_f32 v38, 0, v38")
    a("v_add_f32 v38, 0x%x, v38" % EPS_BITS)
    a("v_rsq_f32 v37, v38")
    a("v_mul_f32 v16, 0x%x, v37" % LOG2E_NEG)
    a("v_sub_f32 v36, 0, v36")
    a("s_lshl_b32 s48, s35, 2")
    a("s_add_u32 s48, s48, s3")
    a("s_mul_i32 s48, s48, 112")
    a("s_mul_i32 s49, s36, 7")
    a("s_add_u32 s48, s48, s49")
    a("s_lshl_b32 s48, s48, 10")
    a("s_add_u32 s48, s48, %d" % WS_HH)
    a("s_add_u32 s49, s48, 4096")
    CSR, Z, O = 152, 184, 192

    def cs_reads(blk):
        b = CSR + 16 * (blk & 1)
        for k in range(4):
            a("ds_read_b128 %s, v34 offset:%d" % (vr(b + 4 * k, 4), 512 * (k >> 1) + 64 * blk + 16 * (k & 1)))

    cs_reads(0)
    for blk in range(7):
        if blk + 1 < 7:
            cs_reads(blk + 1)
            a("s_waitcnt lgkmcnt(4)")
        else:
            a("s_waitcnt lgkmcnt(0)")
        b = CSR + 16 * (blk & 1)
        G = ACC + 16 * blk
        o = O + 4 * (blk & 1)
        for p in range(8):
            a("v_pk_fma_f32 %s, %s, v[36:37], %s op_sel_hi:[1,0,1]" % (vr(G + 2 * p, 2), vr(b + 2 * p, 2), vr(G + 2 * p, 2)))
        for p in range(4):
            a("v_pk_mul_f32 %s, %s, v[16:17] op_sel_hi:[1,0]" % (vr(Z + 2 * p, 2), vr(G + 2 * p, 2)))
        for e in range(8):
            a("v_exp_f32 v%d, v%d" % (Z + e, Z + e))
        for p in range(4):
            a("v_pk_mul_f32 %s, %s, %s" % (vr(G + 2 * p, 2), vr(G + 2 * p, 2), vr(G + 8 + 2 * p, 2)))
        for p in range(4):
            a("v_pk_fma_f32 %s, %s, v[38:39], v[38:39] op_sel_hi:[1,0,0]" % (vr(Z + 2 * p, 2), vr(Z + 2 * p, 2)))
        for e in range(8):
            a("v_rcp_f32 v%d, v%d" % (Z + e, Z + e))
        for p in range(4):
            a("v_pk_mul_f32 %s, %s, %s" % (vr(G + 2 * p, 2), vr(G + 2 * p, 2), vr(Z + 2 * p, 2)))
        for p in range(4):
            a("v_cvt_pk_bf16_f32 v%d, v%d, v%d" % (o + p, G + 2 * p, G + 2 * p + 1))
        vm.issue("buffer_store_dwordx4 %s, v15, s[28:31], s%d offen offset:%d" % (vr(o, 4), 48 + (blk >> 2), 1024 * (blk & 3)))
    a("kd_done:")
    a("s_endpgm")
    return a.finish(), descriptor(name, 216, 56), (name, 256, 256, LDS)


def kernel_e():
    a = Asm()
    vm = Vm(a)
    name = "ke_kernel"
    header(a, name)
    R = 12
    RING = R * 2048
    WSTR = RING + 2048
    LDS = 4 * WSTR
    a("s_cmp_ge_u32 s2, 256")
    a("s_cbranch_scc1 ke_done")
    a("s_load_dwordx4 s[8:11], s[0:1], 72")
    a("s_load_dwordx2 s[32:33], s[0:1], 96")
    a("v_lshrrev_b32 v1, 6, v0")
    a("v_and_b32 v2, 63, v0")
    a("v_readfirstlane_b32 s3, v1")
    a("s_lshr_b32 s34, s2, 3")
    a("s_and_b32 s35, s2, 7")
    a("s_lshl_b32 s35, s35, 2")
    a("s_lshr_b32 s36, s34, 3")
    a("s_add_u32 s35, s35, s36")
    a("s_and_b32 s36, s34, 7")
    a("s_and_b32 s37, s3, 1")
    a("s_lshr_b32 s38, s3, 1")
    a("s_mul_i32 s39, s3, %d" % WSTR)
    a("v_lshlrev_b32 v3, 4, v2")
    a("s_mul_i32 s40, s35, 224")
    a("s_mul_i32 s41, s3, 28")
    a("s_add_u32 s40, s40, s41")
    a("s_lshl_b32 s40, s40, 10")
    a("s_add_u32 s40, s40, %d" % WS_HH)
    a("v_lshrrev_b32 v4, 3, v2")
    a("v_and_b32 v5, 7, v2")
    a("v_lshrrev_b32 v6, 4, v2")
    a("v_and_b32 v7, 1, v6")
    a("v_lshlrev_b32 v8, 2, v7")
    a("v_xor_b32 v5, v5, v8")
    a("v_lshlrev_b32 v5, 4, v5")
    a("v_lshl_add_u32 v4, v4, 10, v5")
    a("s_lshl_b32 s42, s36, 7")
    a("v_add_u32 v4, s42, v4")
    a("s_mul_i32 s43, s3, %d" % (28 * 16384))
    a("v_lshrrev_b32 v9, 2, v2")
    a("v_and_b32 v10, 3, v2")
    a("v_lshlrev_b32 v10, 4, v10")
    a("v_lshl_add_u32 v9, v9, 12, v10")
    a("s_lshl_b32 s44, s36, 1")
    a("s_add_u32 s44, s44, s37")
    a("s_lshl_b32 s44, s44, 17")
    a("s_lshl_b32 s45, s35, 1")
    a("s_add_u32 s45, s45, s38")
    a("s_lshl_b32 s46, s45, 6")
    a("s_add_u32 s44, s44, s46")
    a("s_add_u32 s44, s44, %d" % WS_HT)
    a("s_waitcnt lgkmcnt(0)")
    srd(a, 12, 8, 1792 * 1024)
    srd(a, 16, 10, 2 * MB)
    srd(a, 28, 32, WS_SIZE)
    ACC, HH, FA = 32, 96, 192

    def loads(ks):
        sl = ks % R
        for u in range(2):
            a("s_add_u32 m0, s39, %d" % (2048 * sl + 1024 * u))
            a("s_add_u32 s47, s43, %d" % (16384 * ks + 8192 * u))
            vm.issue("buffer_load_dwordx4 v4, s[12:15], s47 offen lds", ("w", ks))
        for tbi in range(2):
            a("s_add_u32 s47, s40, %d" % (1024 * ks + 114688 * tbi))
            vm.issue("buffer_load_dwordx4 %s, v3, s[28:31], s47 offen" % vr(HH + 8 * sl + 4 * tbi, 4), ("h", ks))

    for ks in range(R):
        loads(ks)
        if ks == 1:
            for u in range(2):
                a("s_add_u32 m0, s39, %d" % (RING + 1024 * u))
                a("s_add_u32 s47, s44, %d" % (65536 * u))
                vm.issue("buffer_load_dwordx4 v9, s[28:31], s47 offen lds", "res")
    a("v_and_b32 v11, 15, v2")
    a("v_lshrrev_b32 v12, 5, v2")
    a("v_lshrrev_b32 v13, 2, v11")
    a("v_lshl_add_u32 v14, v12, 3, v13")
    a("v_and_b32 v15, 3, v11")
    a("v_and_b32 v16, 1, v11")
    a("v_lshrrev_b32 v17, 1, v15")
    a("v_lshl_add_u32 v17, v16, 1, v17")
    a("v_lshlrev_b32 v17, 3, v17")
    a("v_lshl_add_u32 v17, v7, 5, v17")
    a("v_lshrrev_b32 v18, 3, v11")
    a("v_lshl_add_u32 v17, v18, 6, v17")
    a("v_lshl_add_u32 v17, v14, 7, v17")
    a("v_add_u32 v20, s39, v17")
    a("v_xor_b32 v17, 64, v17")
    a("v_add_u32 v21, s39, v17")
    a("v_lshlrev_b32 v18, 3, v15")
    a("v_lshl_add_u32 v18, v7, 5, v18")
    a("v_lshl_add_u32 v18, v14, 6, v18")
    a("v_add_u32 v22, s39, v18")
    a("v_add_u32 v23, s39, v3")
    a("s_lshl_b32 s48, s3, 12")
    a("v_add_u32 v24, s48, v3")
    a("v_add_u32 v25, %d, v24" % (2 * WSTR))
    a("v_and_b32 v26, 31, v2")
    a("v_lshlrev_b32 v26, 10, v26")
    a("v_lshl_add_u32 v26, v12, 4, v26")
    a("s_lshl_b32 s49, s45, 15")
    a("s_lshl_b32 s50, s37, 6")
    a("s_add_u32 s49, s49, s50")
    a("s_add_u32 s49, s49, s42")

    def reads(ks):
        sl, buf = ks % R, ks & 1
        for cb in range(2):
            for hi in range(2):
                a("ds_read_b64_tr_b16 %s, v%d offset:%d" % (vr(FA + 8 * buf + 4 * cb + 2 * hi, 2), 20 + cb, 2048 * sl + 512 * hi))

    vm.wait(("w", 0))
    reads(0)
    for ks in range(28):
        sl, buf = ks % R, ks & 1
        if ks + 1 < 28:
            vm.wait(("w", ks + 1))
            reads(ks + 1)
            a("s_waitcnt lgkmcnt(4)")
        else:
            vm.wait(("h", ks), " lgkmcnt(0)")
        for cb in range(2):
            for tbi in range(2):
                q = cb + 2 * tbi
                c = vr(ACC + 16 * q, 16) if ks else "0"
                a("v_mfma_f32_32x32x16_bf16 %s, %s, %s, %s" % (vr(ACC + 16 * q, 16), vr(FA + 8 * buf + 4 * cb, 4), vr(HH + 8 * sl + 4 * tbi, 4), c))
        if ks + R < 28:
            loads(ks + R)
    RES = FA
    for jj in range(2):
        for hi in range(2):
            a("ds_read_b64_tr_b16 %s, v22 offset:%d" % (vr(RES + 4 * jj + 2 * hi, 2), RING + 1024 * jj + 256 * hi))
    for q in range(4):
        for k in range(4):
            a("ds_write_b128 v23, %s offset:%d" % (vr(ACC + 16 * q + 4 * k, 4), 4096 * q + 1024 * k))
    a("s_waitcnt lgkmcnt(0)")
    a("s_barrier")
    P = HH
    for src in range(4):
        for k in range(4):
            a("ds_read_b128 %s, v%d offset:%d" % (vr(P + 16 * src + 4 * k, 4), 24 + (src >> 1), WSTR * (src & 1) + 1024 * k))
    a("s_mov_b32 s51, 0xffff0000")
    T = ACC
    for d in range(8):
        a("v_lshlrev_b32 v%d, 16, v%d" % (T + 2 * d, RES + d))
        a("v_and_b32 v%d, s51, v%d" % (T + 2 * d + 1, RES + d))
    for src in range(4):
        a("s_waitcnt lgkmcnt(%d)" % (12 - 4 * src))
        for p in range(8):
            a("v_pk_add_f32 %s, %s, %s" % (vr(T + 2 * p, 2), vr(T + 2 * p, 2), vr(P + 16 * src + 2 * p, 2)))
    O = ACC + 16
    for p in range(8):
        a("v_cvt_pk_bf16_f32 v%d, v%d, v%d" % (O + p, T + 2 * p, T + 2 * p + 1))
    for jj in range(2):
        vm.issue("buffer_store_dwordx4 %s, v26, s[16:19], s49 offen offset:%d" % (vr(O + 4 * jj, 4), 32 * jj))
    a("ke_done:")
    a("s_endpgm")
    return a.finish(), descriptor(name, 208, 56), (name, 256, 256, LDS)


def build(kernels, extra_launch=()):
    ref = open("cdna_kernels/%s.s.ref" % NAME).read().split("\n")
    head = [l for l in ref if l.startswith(";") and "@launch" not in l and "Override launch" not in l and "grid=ceil" not in l]
    out = list(head)
    for _, _, (n, g, b, l) in kernels:
        out.append("; @launch kernel=%s grid=(%d,1,1) block=(%d,1,1) lds=%d" % (n, g, b, l))
    out += list(extra_launch)
    out.append('.amdgcn_target "amdgcn-amd-amdhsa--gfx950"')
    out.append(".text")
    for body, _, _ in kernels:
        out.append(body)
    out.append('.section .rodata,"a"')
    for _, d, _ in kernels:
        out.append(".p2align 6")
        out.append(d)
    return "\n".join(out) + "\n"


if __name__ == "__main__":
    txt = build([kernel_a(), kernel_b(), kernel_d(), kernel_e()])
    path = sys.argv[1] if len(sys.argv) > 1 else "cdna_kernels/%s.s" % NAME
    open(path, "w").write(txt)
    print("wrote", path, len(txt))
```

```python
import sys
from asmlib import Asm, vr, ar, sr

NAME = "sequential_preLN__ssm_conv_h3__glu_gated_swiglu__prompt"
MB = 1 << 20
WS_KVT, WS_XT, WS_HT = 0, 2 * MB, 4 * MB
WS_ST1 = 6 * MB
WS_CS = 6 * MB + 16384
WS_GF = 6 * MB + 65536
WS_LF = WS_GF + 32768
WS_EPOCH = WS_LF + 16384
WS_HH = 8 * MB
WS_DBG = 15 * MB + 512 * 1024
WS_SIZE = 16 * MB
EPS_BITS, INV512, LOG2E_NEG = 0x3727C5AC, 0x3B000000, 0xBFB8AA3B
SPIN_LIMIT = 20000

UPB = 57472
WSL = 14336
HR = 114816
FILT, FSTR = 106496, 4160
TILES = 139776
CSX = 158848
CNT = 159232
XB = 100480
UB, USTR = 149632, 4608
L_CS, L_ST = 155776, 156800
LDS_BYTES = 163840
NARCH = 156
R1U = 12

S_WS, S_DBG, S_W, S_W2, S_OUT = 4, 8, 12, 16, 20
S_A, S_B, S_C, S_D = 24, 28, 32, 36
S_X, S_SL, S_XCC, S_NONCE, S_V, S_DP, S_MASK, S_Q, S_C4, S_T0, S_T1, S_T2 = 66, 67, 68, 69, 70, 71, 72, 73, 74, 75, 76, 77
S_P = 40
S_STAMP = 80
DIAG = False
OPT = {}


class Vm:
    def __init__(self, a):
        self.a, self.n, self.tags = a, 0, {}

    def issue(self, text, tag=None):
        self.a(text)
        self.n += 1
        if tag is not None:
            self.tags[tag] = self.n

    def wait(self, tag, extra=""):
        k = self.n - self.tags[tag]
        self.a("s_waitcnt vmcnt(%d)%s" % (min(k, 63), extra))

    def drain(self, extra=""):
        self.a("s_waitcnt vmcnt(0)%s" % extra)


class Lg:
    def __init__(self, a):
        self.a, self.n, self.tags, self.done = a, 0, {}, 0

    def issue(self, text, tag=None):
        self.a(text)
        self.n += 1
        if tag is not None:
            self.tags[tag] = self.n

    def wait(self, tag):
        if self.tags[tag] > self.done:
            self.a("s_waitcnt lgkmcnt(%d)" % min(self.n - self.tags[tag], 15))
            self.done = max(self.tags[tag], self.n - 15)

    def drained(self):
        self.done = self.n


class Stamps:
    def __init__(self, a):
        self.a, self.n, self.names = a, 0, []

    def __call__(self, name, real=False):
        if DIAG:
            self.a("%s s[78:79]" % ("s_memrealtime" if real else "s_memtime"))
            self.a("s_waitcnt lgkmcnt(0)")
            self.a("s_mov_b32 s%d, s78" % (S_STAMP + self.n))
            self.n += 1
            self.names.append(name)
            assert self.n <= 22

    def flush(self):
        if not DIAG:
            return
        a = self.a
        a("s_waitcnt vmcnt(0)")
        self("end")
        self("rend", True)
        a("s_mov_b64 exec, 1")
        a("s_lshl_b32 s78, s2, 10")
        a("s_lshl_b32 s79, s3, 7")
        a("s_add_u32 s78, s78, s79")
        a("s_add_u32 s78, s78, %d" % WS_DBG)
        a("v_mov_b32 v1, 0")
        for i in range(self.n):
            a("v_mov_b32 v4, s%d" % (S_STAMP + i))
            a("buffer_store_dword v4, v1, s[4:7], s78 offen offset:%d" % (4 * i))


def srd(a, d, p, size):
    a("s_mov_b32 s%d, s%d" % (d, p))
    a("s_and_b32 s%d, s%d, 0xffff" % (d + 1, p + 1))
    a("s_mov_b32 s%d, 0x%x" % (d + 2, size))
    a("s_mov_b32 s%d, 0x20000" % (d + 3))


def wave_sum(a, regs):
    for mod in ("quad_perm:[1,0,3,2] row_mask:0xf bank_mask:0xf", "quad_perm:[2,3,0,1] row_mask:0xf bank_mask:0xf",
                "row_half_mirror row_mask:0xf bank_mask:0xf", "row_mirror row_mask:0xf bank_mask:0xf",
                "row_bcast:15 row_mask:0xa bank_mask:0xf", "row_bcast:31 row_mask:0xc bank_mask:0xf"):
        for r in regs:
            a("v_add_f32_dpp v%d, v%d, v%d %s" % (r, r, r, mod))


class Prog:
    def __init__(self, a, hi):
        self.a, self.hi = a, hi
        self.vm, self.lg, self.st = Vm(a), Lg(a), Stamps(a)
        self.p = "h" if hi else "l"
        self.nlab = 0

    def label(self, base):
        self.nlab += 1
        return "%s_%s%d" % (self.p, base, self.nlab)

    def dma(self, m0, soff, text, tag=None):
        self.a(m0)
        self.a(soff if soff else "s_nop 0")
        self.vm.issue(text, tag)

    def store_pair(self, text, tag=None):
        a = self.a
        l1, l2 = self.label("sp"), self.label("sq")
        a("s_cmp_eq_u32 s%d, 0" % S_V)
        a("s_cbranch_scc0 %s" % l1)
        a(text + " sc1")
        a("s_branch %s" % l2)
        a("%s:" % l1)
        self.vm.issue(text, tag)
        a("%s:" % l2)

    def view(self, vreg):
        a = self.a
        a("v_and_b32 v%d, 15, v%d" % (vreg, vreg))
        a("v_cmp_eq_u32 vcc, s%d, v%d" % (S_XCC, vreg))
        a("s_cmp_eq_u32 vcc_lo, -1")
        a("s_cselect_b32 s%d, 1, 0" % S_V)

    def signal(self, phase, t0):
        a = self.a
        skip = self.label("sg")
        a("s_lshl_b32 s%d, s%d, 5" % (S_T0, S_X))
        a("s_add_u32 s%d, s%d, s%d" % (S_T0, S_T0, S_SL))
        a("s_or_b32 s%d, s%d, %d" % (S_T1, S_XCC, phase << 4))
        a("v_mov_b32 v%d, s%d" % (t0, S_T1))
        a("v_mov_b32 v%d, 0" % (t0 + 1))
        a("s_mov_b64 exec, 1")
        self.vm.issue("buffer_store_byte v%d, v%d, s[8:11], s%d offen" % (t0, t0 + 1, S_T0))
        a("s_cmp_eq_u32 s%d, 0" % S_V)
        a("s_cbranch_scc0 %s" % skip)
        a("s_lshl_b32 s%d, s%d, 7" % (S_T0, S_T0))
        a("s_add_u32 s%d, s%d, %d" % (S_T0, S_T0, WS_GF))
        a("s_add_u32 s%d, s%d, %d" % (S_T1, S_NONCE, phase))
        a("v_mov_b32 v%d, s%d" % (t0 + 2, S_T1))
        a("buffer_store_dword v%d, v%d, s[4:7], s%d offen sc1" % (t0 + 2, t0 + 1, S_T0))
        a("%s:" % skip)
        a("s_mov_b64 exec, -1")

    def wait_group(self, phase, count, t0):
        a = self.a
        loop, fast, chk, done = self.label("wg"), self.label("wf"), self.label("wc"), self.label("wd")
        a("s_lshl_b32 s%d, s%d, 5" % (S_T0, S_X))
        if count == 16:
            a("s_and_b32 s%d, s%d, 16" % (S_T1, S_SL))
            a("s_add_u32 s%d, s%d, s%d" % (S_T0, S_T0, S_T1))
        a("s_lshl_b32 s%d, s%d, 7" % (S_T1, S_T0))
        a("s_add_u32 s%d, s%d, %d" % (S_T1, S_T1, WS_GF))
        a("v_lshlrev_b32 v%d, 7, v2" % (t0 + 2))
        a("s_mov_b32 s%d, 0" % S_T2)
        a("s_mov_b32 exec_hi, 0")
        a("s_mov_b32 exec_lo, 0x%x" % ((1 << count) - 1))
        a("%s:" % loop)
        a("buffer_load_ubyte v%d, v2, s[8:11], s%d offen sc1" % (t0, S_T0))
        a("s_cmp_eq_u32 s%d, 0" % S_V)
        a("s_cbranch_scc0 %s" % fast)
        a("buffer_load_dword v%d, v%d, s[4:7], s%d offen sc1" % (t0 + 1, t0 + 2, S_T1))
        a("s_waitcnt vmcnt(0)")
        a("v_subrev_u32 v%d, s%d, v%d" % (t0 + 1, S_NONCE, t0 + 1))
        a("v_subrev_u32 v%d, %d, v%d" % (t0 + 1, phase, t0 + 1))
        a("v_cmp_gt_u32 s[62:63], %d, v%d" % (4 - phase, t0 + 1))
        a("s_branch %s" % chk)
        a("%s:" % fast)
        a("s_mov_b64 s[62:63], 0")
        a("%s:" % chk)
        a("s_waitcnt vmcnt(0)")
        a("v_cmp_le_u32 vcc, %d, v%d" % (phase << 4, t0))
        a("s_nop 1")
        a("s_or_b64 vcc, vcc, s[62:63]")
        a("s_cmp_eq_u64 vcc, exec")
        a("s_cbranch_scc1 %s" % done)
        a("s_add_u32 s%d, s%d, 1" % (S_T2, S_T2))
        a("s_cmp_lt_u32 s%d, %d" % (S_T2, SPIN_LIMIT))
        a("s_cbranch_scc1 %s" % loop)
        a("%s:" % done)
        a("s_mov_b64 exec, -1")

    def leader_publish(self, phase, t0):
        a = self.a
        a("s_lshl_b32 s%d, s%d, 7" % (S_T0, S_X))
        a("s_add_u32 s%d, s%d, %d" % (S_T0, S_T0, WS_LF + (phase - 1) * 8192))
        a("s_add_u32 s%d, s%d, %d" % (S_T1, S_NONCE, phase))
        a("v_mov_b32 v%d, s%d" % (t0, S_T1))
        a("v_lshlrev_b32 v%d, 10, v2" % (t0 + 1))
        a("s_mov_b64 exec, 0xff")
        a("buffer_store_dword v%d, v%d, s[4:7], s%d offen sc1" % (t0, t0 + 1, S_T0))
        a("s_mov_b64 exec, -1")

    def leaders_addr(self, phase, vaddr, sreg):
        a = self.a
        a("s_lshl_b32 s%d, s%d, 10" % (sreg, S_X))
        a("s_add_u32 s%d, s%d, %d" % (sreg, sreg, WS_LF + (phase - 1) * 8192))
        a("v_and_b32 v%d, 7, v2" % vaddr)
        a("v_lshlrev_b32 v%d, 7, v%d" % (vaddr, vaddr))

    def wait_leaders(self, phase, vaddr, sreg, t0, preloaded):
        a = self.a
        loop, chk, done = self.label("ll"), self.label("lc"), self.label("ld")
        a("s_add_u32 s%d, s%d, %d" % (S_T1, S_NONCE, phase))
        a("s_mov_b32 s%d, 0" % S_T2)
        if preloaded:
            a("s_branch %s" % chk)
        a("%s:" % loop)
        a("buffer_load_dword v%d, v%d, s[4:7], s%d offen sc1" % (t0, vaddr, sreg))
        a("s_waitcnt vmcnt(0)")
        a("%s:" % chk)
        a("v_cmp_ne_u32 vcc, s%d, v%d" % (S_T1, t0))
        a("s_nop 1")
        a("s_cmp_eq_u64 vcc, 0")
        a("s_cbranch_scc1 %s" % done)
        a("s_add_u32 s%d, s%d, 1" % (S_T2, S_T2))
        a("s_cmp_lt_u32 s%d, %d" % (S_T2, SPIN_LIMIT))
        a("s_cbranch_scc1 %s" % loop)
        a("%s:" % done)

    def lo_rendezvous(self, idx, t0, only_wave0_waits):
        a = self.a
        loop, done = self.label("rv"), self.label("rd")
        a("v_mov_b32 v%d, %d" % (t0, CNT + 4 * idx))
        a("v_mov_b32 v%d, 1" % (t0 + 1))
        a("s_mov_b64 exec, 1")
        a("ds_add_u32 v%d, v%d" % (t0, t0 + 1))
        a("s_mov_b64 exec, -1")
        if only_wave0_waits:
            a("s_cmp_eq_u32 s3, 0")
            a("s_cbranch_scc0 %s" % done)
        a("s_mov_b32 s%d, 0" % S_T2)
        a("%s:" % loop)
        a("ds_read_b32 v%d, v%d" % (t0 + 1, t0))
        a("s_add_u32 s%d, s%d, 1" % (S_T2, S_T2))
        a("s_waitcnt lgkmcnt(0)")
        a("v_readfirstlane_b32 s%d, v%d" % (S_T1, t0 + 1))
        a("s_cmp_ge_u32 s%d, %d" % (S_T2, SPIN_LIMIT * 8))
        a("s_cbranch_scc1 %s" % done)
        a("s_cmp_lt_u32 s%d, 4" % S_T1)
        a("s_cbranch_scc1 %s" % loop)
        a("%s:" % done)

    def phase_a_lo(self):
        a, vm, st = self.a, self.vm, self.st
        a("s_lshl_b32 s75, s%d, 16" % S_SL)
        a("s_lshl_b32 s76, s%d, 7" % S_X)
        a("s_add_u32 s75, s75, s76")
        a("v_lshrrev_b32 v4, 3, v0")
        a("v_and_b32 v5, 7, v0")
        a("v_lshlrev_b32 v6, 11, v4")
        a("v_lshl_add_u32 v6, v5, 4, v6")
        a("v_add_u32 v6, s75, v6")
        a("v_subrev_u32 v7, 3072, v6")
        a("v_subrev_u32 v8, 2048, v6")
        a("v_subrev_u32 v9, 1024, v6")
        a("s_lshl_b32 s76, s%d, 9" % S_X)
        a("v_lshlrev_b32 v10, 6, v5")
        a("v_add_u32 v10, s76, v10")
        a("s_lshl_b32 s76, s2, 13")
        a("s_lshl_b32 s77, s3, 11")
        a("s_add_u32 s76, s76, s77")
        a("v_add_u32 v11, s76, v3")
        a("s_waitcnt lgkmcnt(0)")
        st("karg")
        srd(a, S_A, 40, 2 * MB)
        K, V, X, SH, ST = 16, 36, 44, 52, 68
        for i in range(2):
            vm.issue("buffer_load_dwordx4 %s, v11, s[24:27], 0 offen offset:%d" % (vr(ST + 4 * i, 4), 1024 * i), "st")
        srd(a, S_B, 42, 2 * MB)
        for i, vo in enumerate((7, 8, 9)):
            vm.issue("buffer_load_dwordx4 %s, v%d, s[28:31], 0 offen" % (vr(K + 4 * i, 4), vo))
        vm.issue("buffer_load_dwordx4 %s, v6, s[28:31], 0 offen" % vr(K + 12, 4))
        vm.issue("buffer_load_dwordx4 %s, v6, s[28:31], 0 offen offset:1024" % vr(K + 16, 4))
        srd(a, S_C, 44, 2 * MB)
        for i in range(2):
            vm.issue("buffer_load_dwordx4 %s, v6, s[32:35], 0 offen offset:%d" % (vr(V + 4 * i, 4), 1024 * i))
        srd(a, S_D, 46, 4096)
        for i in range(4):
            vm.issue("buffer_load_dwordx4 %s, v10, s[36:39], 0 offen offset:%d" % (vr(SH + 4 * i, 4), 16 * i), "kvs")
        for i in range(2):
            vm.issue("buffer_load_dwordx4 %s, v6, s[24:27], 0 offen offset:%d" % (vr(X + 4 * i, 4), 1024 * i), "x")
        self.common_srds()
        skip = self.label("pub")
        a("s_cmp_eq_u32 s3, 0")
        a("s_cbranch_scc0 %s" % skip)
        a("s_lshl_b32 s75, s%d, 5" % S_X)
        a("s_add_u32 s75, s75, s%d" % S_SL)
        a("v_mov_b32 v12, s%d" % S_XCC)
        a("v_mov_b32 v13, 0")
        a("v_mov_b32 v14, 0")
        a("v_mov_b32 v15, %d" % CNT)
        a("s_mov_b64 exec, 1")
        a("buffer_store_byte v12, v13, s[8:11], s75 offen")
        a("ds_write2_b32 v15, v13, v14 offset0:0 offset1:1")
        a("s_mov_b64 exec, -1")
        a("s_waitcnt lgkmcnt(0)")
        a("%s:" % skip)
        vm.n += 1
        a("s_barrier")
        self.scalar_loads()
        a("v_lshlrev_b32 v12, 1, v4")
        a("v_sub_u32 v13, 62, v12")
        a("v_mul_u32_u24 v13, 144, v13")
        a("v_lshl_add_u32 v13, v5, 4, v13")
        a("v_add_u32 v13, %d, v13" % TILES)
        a("v_mul_u32_u24 v14, 144, v12")
        a("v_lshl_add_u32 v14, v5, 4, v14")
        a("v_add_u32 v14, %d, v14" % (TILES + 9216))
        a("v_lshrrev_b32 v4, 4, v2")
        a("v_and_b32 v5, 15, v2")
        a("v_lshrrev_b32 v7, 2, v5")
        a("v_lshl_add_u32 v7, v4, 3, v7")
        a("v_mul_u32_u24 v7, 144, v7")
        a("v_and_b32 v8, 3, v5")
        a("v_lshl_add_u32 v7, v8, 3, v7")
        a("s_lshl_b32 s75, s3, 5")
        a("s_add_u32 s75, s75, %d" % TILES)
        a("v_add_u32 v7, s75, v7")
        a("s_lshl_b32 s75, s%d, 6" % S_X)
        a("s_lshl_b32 s76, s3, 4")
        a("s_add_u32 s75, s75, s76")
        a("v_add_u32 v8, s75, v5")
        a("v_lshlrev_b32 v8, 12, v8")
        a("v_lshl_add_u32 v8, v4, 4, v8")
        a("s_lshl_b32 s75, s%d, 7" % S_SL)
        a("s_sub_u32 s40, %d, s75" % (WS_KVT + 3968))
        a("s_add_u32 s41, s75, %d" % WS_XT)
        a("s_waitcnt vmcnt(%d)" % (vm.n - 1 - vm.tags["st"]))
        st("strow")
        U, S0, Q0, R = 80, 96, 98, 100
        for i in range(8):
            a("v_lshlrev_b32 v%d, 16, v%d" % (U + 2 * i, ST + i))
            a("v_and_b32 v%d, s%d, v%d" % (U + 2 * i + 1, S_MASK, ST + i))
        for r in range(2):
            a("v_add_f32 v%d, v%d, v%d" % (S0 + r, U + 8 * r, U + 8 * r + 1))
        for e in range(2, 8):
            for r in range(2):
                a("v_add_f32 v%d, v%d, v%d" % (S0 + r, S0 + r, U + 8 * r + e))
        wave_sum(a, [S0, S0 + 1])
        for r in range(2):
            a("v_mul_f32 v%d, 0x%x, v%d" % (S0 + r, INV512, S0 + r))
        for r in range(2):
            a("v_readlane_b32 s%d, v%d, 63" % (42 + r, S0 + r))
        for e in range(8):
            for r in range(2):
                a("v_subrev_f32 v%d, s%d, v%d" % (U + 8 * r + e, 42 + r, U + 8 * r + e))
        for r in range(2):
            a("v_mul_f32 v%d, v%d, v%d" % (Q0 + r, U + 8 * r, U + 8 * r))
        for e in range(1, 8):
            for r in range(2):
                a("v_fmac_f32 v%d, v%d, v%d" % (Q0 + r, U + 8 * r + e, U + 8 * r + e))
        wave_sum(a, [Q0, Q0 + 1])
        a("s_mov_b32 s44, 0x%x" % INV512)
        a("v_mov_b32 v104, 0x%x" % EPS_BITS)
        for r in range(2):
            a("v_fma_f32 v%d, v%d, s44, v104" % (Q0 + r, Q0 + r))
        for r in range(2):
            a("v_rsq_f32 v%d, v%d" % (R + 2 * r, Q0 + r))
        for r in range(2):
            a("v_mul_f32 v%d, v%d, -v%d" % (R + 2 * r + 1, R + 2 * r, S0 + r))
        a("s_lshl_b32 s75, s2, 6")
        a("s_lshl_b32 s76, s3, 4")
        a("s_add_u32 s75, s75, s76")
        a("s_add_u32 s75, s75, %d" % WS_ST1)
        a("v_mov_b32 v9, 0")
        a("s_mov_b32 exec_lo, 0")
        a("s_mov_b32 exec_hi, 0x80000000")
        vm.issue("buffer_store_dwordx4 %s, v9, s[4:7], s75 offen sc1" % vr(R, 4))
        a("s_mov_b64 exec, -1")
        a("s_lshl_b32 s75, s%d, 5" % S_X)
        a("v_and_b32 v9, 31, v2")
        vm.issue("buffer_load_ubyte v10, v9, s[8:11], s75 offen sc1", "tab")
        a("s_waitcnt vmcnt(%d)" % (vm.n - 1 - vm.tags["kvs"]))
        st("kvs")
        KU, WU, VU, ACC, OUT = 80, 90, 98, 102, 106
        for d in range(4):
            for i in range(5):
                a("v_lshlrev_b32 v%d, 16, v%d" % (KU + 2 * i, K + 4 * i + d))
                a("v_and_b32 v%d, s%d, v%d" % (KU + 2 * i + 1, S_MASK, K + 4 * i + d))
            for e in range(2):
                for j in range(4):
                    src = SH + 2 * (2 * d + e) + (j >> 1)
                    if j & 1:
                        a("v_and_b32 v%d, s%d, v%d" % (WU + 2 * j + e, S_MASK, src))
                    else:
                        a("v_lshlrev_b32 v%d, 16, v%d" % (WU + 2 * j + e, src))
            for i in range(2):
                a("v_lshlrev_b32 v%d, 16, v%d" % (VU + 2 * i, V + 4 * i + d))
                a("v_and_b32 v%d, s%d, v%d" % (VU + 2 * i + 1, S_MASK, V + 4 * i + d))
            for i in range(2):
                a("v_pk_mul_f32 %s, %s, %s" % (vr(ACC + 2 * i, 2), vr(KU + 2 * i, 2), vr(WU + 6, 2)))
            for j in (2, 1, 0):
                for i in range(2):
                    a("v_pk_fma_f32 %s, %s, %s, %s" % (vr(ACC + 2 * i, 2), vr(KU + 2 * (i + 3 - j), 2), vr(WU + 2 * j, 2), vr(ACC + 2 * i, 2)))
            for i in range(2):
                a("v_pk_mul_f32 %s, %s, %s" % (vr(ACC + 2 * i, 2), vr(ACC + 2 * i, 2), vr(VU + 2 * i, 2)))
            for i in range(2):
                a("v_cvt_pk_bf16_f32 v%d, v%d, v%d" % (OUT + 4 * i + d, ACC + 2 * i, ACC + 2 * i + 1))
        a("ds_write_b128 v13, %s offset:144" % vr(OUT, 4))
        a("ds_write_b128 v13, %s" % vr(OUT + 4, 4))
        a("s_waitcnt vmcnt(%d)" % (vm.n - 1 - vm.tags["x"]))
        a("ds_write_b128 v14, %s" % vr(X, 4))
        a("ds_write_b128 v14, %s offset:144" % vr(X + 4, 4))
        a("s_waitcnt lgkmcnt(0)")
        self.lo_rendezvous(0, 80, False)
        st("tiles")
        T = 84
        for ten in range(2):
            for s in range(2):
                for hi in range(2):
                    a("ds_read_b64_tr_b16 %s, v7 offset:%d" % (vr(T + 8 * ten + 4 * s + 2 * hi, 2), 9216 * ten + 144 * (32 * s + 4 * hi)))
        vm.wait("tab")
        self.view(10)
        self.nonce()
        a("s_waitcnt lgkmcnt(0)")
        for ten in range(2):
            for s in range(2):
                self.store_pair("buffer_store_dwordx4 %s, v8, s[4:7], s%d offen offset:%d" % (vr(T + 8 * ten + 4 * s, 4), 40 + ten, 64 * s))
        vm.drain()
        st("adrain")
        self.lo_rendezvous(1, 80, True)
        skip = self.label("sig")
        a("s_cmp_eq_u32 s3, 0")
        a("s_cbranch_scc0 %s" % skip)
        self.signal(1, 80)
        a("%s:" % skip)

    def common_srds(self):
        a = self.a
        srd(a, S_WS, 64, WS_SIZE)
        srd(a, S_DBG, 62, 256)
        srd(a, S_W2, 58, 1792 * 1024)
        srd(a, S_OUT, 60, 2 * MB)

    def scalar_loads(self):
        a = self.a
        a("s_mov_b32 s75, %d" % WS_EPOCH)
        a("s_load_dword s%d, s[64:65], s75" % S_NONCE)
        a("s_lshr_b32 s76, s%d, 11" % S_C4)
        a("s_and_b32 s76, s76, 0xfffc")
        a("s_load_dword s%d, s[50:51], s76" % S_DP)

    def nonce(self):
        a = self.a
        a("s_and_b32 s%d, s%d, -4" % (S_NONCE, S_NONCE))
        a("s_add_u32 s%d, s%d, 4" % (S_NONCE, S_NONCE))
        if self.hi:
            a("s_and_b32 s%d, s%d, 0xffff0000" % (S_DP, S_DP))
        else:
            a("s_lshl_b32 s%d, s%d, 16" % (S_DP, S_DP))

    def phase_a_hi(self):
        a, vm, st = self.a, self.vm, self.st
        a("v_lshrrev_b32 v4, 3, v2")
        a("v_and_b32 v5, 7, v2")
        a("v_lshrrev_b32 v6, 2, v2")
        a("v_and_b32 v6, 4, v6")
        a("v_xor_b32 v5, v5, v6")
        a("v_lshlrev_b32 v5, 4, v5")
        a("v_lshl_add_u32 v4, v4, 10, v5")
        a("s_and_b32 s75, s%d, 7" % S_SL)
        a("s_lshl_b32 s75, s75, 7")
        a("v_add_u32 v4, s75, v4")
        a("v_and_b32 v6, 1, v2")
        a("v_lshrrev_b32 v5, 1, v2")
        a("v_mul_u32_u24 v5, 3584, v5")
        a("v_lshl_add_u32 v5, v6, 4, v5")
        a("s_waitcnt lgkmcnt(0)")
        st("karg")
        srd(a, S_A, 48, 2 * MB)
        self.common_srds()
        a("s_cmp_ge_u32 s%d, 2" % S_Q)
        a("s_cselect_b32 s75, s56, s54")
        a("s_cselect_b32 s76, s57, s55")
        srd(a, S_W, 75, 512 * 3584)
        a("s_lshr_b32 s40, s%d, 2" % S_SL)
        a("s_lshl_b32 s40, s40, 3")
        a("s_add_u32 s40, s40, s%d" % S_X)
        a("s_cmp_ge_u32 s40, 28")
        a("s_cselect_b32 s75, s56, s54")
        a("s_cselect_b32 s76, s57, s55")
        a("s_cselect_b32 s41, 28, 0")
        a("s_cselect_b32 s42, 7168, 0")
        srd(a, S_B, 75, 512 * 3584)
        a("s_sub_u32 s40, s40, s41")
        a("s_lshl_b32 s40, s40, 2")
        a("s_and_b32 s41, s%d, 3" % S_SL)
        a("s_add_u32 s40, s40, s41")
        a("s_lshl_b32 s43, s40, 6")
        a("s_add_u32 s43, s43, s42")
        a("s_add_u32 s43, s43, %d" % WS_CS)
        a("s_lshl_b32 s40, s40, 5")
        a("s_mul_i32 s41, s%d, %d" % (S_Q, 128 * 3584))
        a("s_add_u32 s40, s40, s41")
        a("s_lshr_b32 s44, s%d, 1" % S_Q)
        a("s_and_b32 s45, s%d, 1" % S_Q)
        a("s_and_b32 s46, s%d, 0xffffe000" % S_C4)
        a("s_lshl_b32 s47, s44, 12")
        a("s_add_u32 s46, s46, s47")
        a("s_lshl_b32 s47, s44, 2")
        a("s_lshl_b32 s52, s45, 1")
        a("s_add_u32 s47, s47, s52")
        a("s_mul_i32 s47, s47, %d" % FSTR)
        a("s_add_u32 s47, s47, %d" % FILT)
        a("s_lshl_b32 s52, s45, 2")
        a("s_add_u32 s52, s52, s46")
        a("s_barrier")
        a("s_load_dwordx2 s[54:55], s[48:49], s46")
        self.scalar_loads()
        for k in range(2):
            for i in range(4):
                self.dma("s_add_u32 m0, s47, %d" % (32 + FSTR * k), "s_add_u32 s53, s52, %d" % (2 * k),
                         "buffer_load_dwordx4 v3, s[24:27], s53 offen offset:%d lds" % (1024 * i), "filt")
        a("s_mul_i32 s56, s%d, %d" % (S_Q, 2048 * R1U))
        a("s_mul_i32 s57, s%d, %d" % (S_Q, 28 * 16384))
        nr1 = 2 * R1U
        early = OPT.get("r1_early", nr1)
        for z in range(early):
            self.dma("s_add_u32 m0, s56, %d" % (1024 * z), "s_add_u32 s53, s57, %d" % (8192 * z),
                     "buffer_load_dwordx4 v4, s[16:19], s53 offen lds", "r1")
        a("s_waitcnt lgkmcnt(0)")
        self.nonce()
        a("s_lshl_b32 s58, s54, 16")
        a("s_lshr_b32 s59, s54, 16")
        a("s_lshl_b32 s60, s55, 16")
        a("s_or_b32 s59, s59, s60")
        a("s_cmp_eq_u32 s45, 0")
        a("s_cselect_b32 s54, 0, s54")
        a("s_cselect_b32 s60, 0, s58")
        a("s_cselect_b32 s59, s58, s59")
        for r in range(8, 16):
            a("v_mov_b32 v%d, 0" % r)
        a("v_mov_b32 v15, s54")
        a("v_mov_b32 v7, s47")
        a("s_mov_b64 exec, 1")
        a("ds_write_b128 v7, v[8:11]")
        a("ds_write_b128 v7, v[8:11] offset:%d" % FSTR)
        a("ds_write_b128 v7, v[12:15] offset:16")
        a("s_waitcnt lgkmcnt(0)")
        a("v_mov_b32 v14, s60")
        a("v_mov_b32 v15, s59")
        a("ds_write_b128 v7, v[12:15] offset:%d" % (FSTR + 16))
        a("s_mov_b64 exec, -1")
        vm.wait("filt", " lgkmcnt(0)")
        st("filt")
        self.r1_rest = [(z) for z in range(early, nr1)]

    def conv(self):
        a, vm, lg, st, hi = self.a, self.vm, self.lg, self.st, self.hi
        AF, ACC, BF = 16, 80, 112
        a("s_barrier")
        if hi:
            for z in self.r1_rest:
                self.dma("s_add_u32 m0, s56, %d" % (1024 * z), "s_add_u32 s53, s57, %d" % (8192 * z),
                         "buffer_load_dwordx4 v4, s[16:19], s53 offen lds", "r1")
            for j in range(4):
                a("s_add_u32 s53, s40, %d" % (32 * 3584 * j))
                vm.issue("buffer_load_dwordx4 %s, v5, s[28:31], s53 offen" % vr(128 + 4 * j, 4), "cs")
        a("v_and_b32 v6, 15, v2")
        a("v_lshrrev_b32 v7, 4, v2")
        a("v_add_u32 v8, 1, v6")
        a("v_and_b32 v9, 3, v8")
        a("v_mul_u32_u24 v9, %d, v9" % FSTR)
        a("v_and_b32 v8, 28, v8")
        a("v_lshl_add_u32 v9, v8, 1, v9")
        a("v_lshl_add_u32 v9, v7, 4, v9")
        a("s_lshl_b32 s61, s%d, 6" % S_Q)
        a("s_add_u32 s75, s61, %d" % (FILT + (4 * FSTR if hi else 0)))
        a("v_add_u32 v9, s75, v9")
        for s in range(16):
            for h in range(2):
                a("ds_read_b64 %s, v9 offset:%d" % (vr(AF + 4 * s + 2 * h, 2), 256 * s + 8 * h))
        ub = UB + (USTR if hi else 0)
        a("v_lshlrev_b32 v8, 4, v7")
        a("v_lshlrev_b32 v10, 5, v6")
        a("v_sub_u32 v8, v8, v10")
        a("s_add_u32 s75, s61, %d" % (ub + 480))
        a("v_add_u32 v8, s75, v8")
        a("v_lshl_add_u32 v10, v7, 3, v10")
        a("s_lshl_b32 s75, s%d, 10" % S_Q)
        a("s_add_u32 s76, s75, s%d" % S_C4)
        a("v_add_u32 v11, s76, v10")
        a("s_sub_u32 s76, %d, s75" % (ub + 4088 - 512))
        a("v_sub_u32 v12, s76, v10")
        a("v_lshlrev_b32 v13, 2, v10")
        a("s_lshl_b32 s58, s%d, 12" % S_Q)
        a("s_add_u32 s58, s58, %d" % WS_ST1)
        for r in range(BF, BF + 4):
            a("v_mov_b32 v%d, 0" % r)
        a("v_and_b32 v14, 31, v2")
        a("v_lshlrev_b32 v14, 4, v14")
        a("v_add_u32 v14, %d, v14" % (ub + 4096))
        a("ds_write_b128 v14, %s" % vr(BF, 4))
        if not hi:
            skip, skip2 = self.label("w1"), self.label("w1l")
            a("s_cmp_eq_u32 s3, 0")
            a("s_cbranch_scc0 %s" % skip)
            self.wait_group(1, 32, 124)
            a("s_cmp_eq_u32 s%d, 0" % S_SL)
            a("s_cbranch_scc0 %s" % skip)
            self.leader_publish(1, 124)
            a("%s:" % skip)
        a("s_waitcnt lgkmcnt(0)")
        st("sync1")
        a("s_barrier")
        XR = 124
        if not hi:
            a("s_lshr_b32 s75, s3, 1")
            a("s_and_b32 s76, s3, 1")
            a("s_lshl_b32 s76, s76, 11")
            a("s_mul_i32 s77, s75, %d" % USTR)
            a("s_add_u32 s77, s77, s76")
            a("s_add_u32 m0, s77, %d" % UB)
            a("s_lshl_b32 s75, s75, 12")
            a("s_add_u32 s75, s75, s76")
            a("s_add_u32 s75, s75, s%d" % S_C4)
            vm.issue("buffer_load_dwordx4 v3, s[4:7], s75 offen sc1 lds")
            vm.issue("buffer_load_dwordx4 v3, s[4:7], s75 offen offset:1024 sc1 lds", "u")
        a("s_mov_b32 s59, %d" % WS_XT)
        for e in range(2):
            vm.issue("buffer_load_dwordx2 %s, v11, s[4:7], s59 offen offset:%d sc1" % (vr(XR + 2 * e, 2), 512 * e), "x")
        a("v_lshrrev_b32 v14, 2, v6")
        a("v_lshrrev_b32 v15, 1, v7")
        a("v_lshl_add_u32 v14, v15, 3, v14")
        a("v_and_b32 v15, 1, v6")
        a("v_bfe_u32 v144, v6, 1, 1")
        a("v_lshl_add_u32 v15, v15, 1, v144")
        a("v_lshlrev_b32 v15, 3, v15")
        a("v_and_b32 v144, 1, v7")
        a("v_lshl_add_u32 v15, v144, 5, v15")
        a("v_lshrrev_b32 v144, 3, v6")
        a("v_lshl_add_u32 v15, v144, 6, v15")
        a("v_lshl_add_u32 v144, v14, 7, v15")
        a("s_mul_i32 s75, s%d, %d" % (S_Q, 2048 * R1U))
        a("v_add_u32 v14, s75, v144")
        a("v_xor_b32 v15, 64, v14")
        self.leaders_addr(1, 145, 60)
        vm.wait("r1" if hi else "u")
        st("u")
        a("s_barrier")
        NB = 3

        def rd_b(bi):
            lg.issue("ds_read_b128 %s, v8 offset:%d" % (vr(BF + 4 * (bi % NB), 4), 256 * (15 - bi)), ("B", bi))

        fill = []
        for u in range(R1U):
            for cb in range(2):
                for h in range(2):
                    fill.append("ds_read_b64_tr_b16 %s, v%d offset:%d" % (ar(8 * u + 4 * cb + 2 * h, 2), 14 + cb, 2048 * u + 512 * h))
        rd_b(0)
        rd_b(1)
        started = set()
        SR = None
        for bi in range(16):
            if bi + 2 < 16:
                rd_b(bi + 2)
            lg.wait(("B", bi))
            for i in range(7, -1, -1):
                s = 2 * i + 1 - bi
                if s < 0:
                    continue
                c = vr(ACC + 4 * i, 4) if i in started else "0"
                started.add(i)
                a("v_mfma_f32_16x16x32_bf16 %s, %s, %s, %s" % (vr(ACC + 4 * i, 4), vr(AF + 4 * s, 4), vr(BF + 4 * (bi % NB), 4), c))
                if fill:
                    lg.issue(fill.pop(0))
            if bi == 4:
                vm.issue("buffer_load_dword v146, v145, s[4:7], s60 offen sc1", "lf")
            if bi == 7:
                vm.wait("lf")
                self.wait_leaders(1, 145, 60, 146, True)
                SR = AF + 48
                a("s_lshl_b32 s75, s%d, 5" % S_X)
                a("v_and_b32 v146, 31, v2")
                vm.issue("buffer_load_ubyte v147, v146, s[8:11], s75 offen sc1")
                for e in range(2):
                    for h in range(2):
                        vm.issue("buffer_load_dwordx4 %s, v13, s[4:7], s58 offen offset:%d sc1" % (vr(SR + 8 * e + 4 * h, 4), 2048 * e + 16 * h), "stat")
            if bi == 9 and hi:
                vm.wait("cs")
                self.colsum_partial(128, AF + 32)
        assert not fill
        st("mfma")
        KV, OWN, RX = BF, AF, AF + 8
        for e in range(2):
            a("ds_read_b64 %s, v12 offset:%d" % (vr(KV + 2 * e, 2), 512 * (1 - e)))
        xb = XB + (24576 if hi else 0)
        a("v_add_u32 v8, %d, v3" % xb)
        a("s_mul_i32 s75, s%d, 6144" % S_Q)
        a("v_add_u32 v9, s75, v8")
        a("s_nop 4")
        done = self.label("xd")
        labs = [self.label("xq") for _ in range(4)]
        for q in range(1, 4):
            a("s_cmp_eq_u32 s%d, %d" % (S_Q, q))
            a("s_cbranch_scc1 %s" % labs[q])
        for q in range(4):
            if q:
                a("%s:" % labs[q])
            for dst in range(4):
                if dst == q:
                    continue
                for e in range(2):
                    a("ds_write_b128 v8, %s offset:%d" % (vr(ACC + 8 * dst + 4 * e, 4), 6144 * dst + 2048 * ((q - dst - 1) % 4) + 1024 * e))
            for k in range(8):
                a("v_mov_b32 v%d, v%d" % (OWN + k, ACC + 8 * q + k))
            if q < 3:
                a("s_branch %s" % done)
        a("%s:" % done)
        a("s_waitcnt lgkmcnt(0)")
        lg.drained()
        a("s_barrier")
        for k in range(6):
            a("ds_read_b128 %s, v9 offset:%d" % (vr(RX + 4 * k, 4), 1024 * k))
        vm.wait("stat")
        self.view(147)
        if hi:
            self.colsum_final(ACC + 24)
        XU, KU, LN = ACC, ACC + 8, ACC + 16
        for e in range(2):
            for d in range(2):
                a("v_lshlrev_b32 v%d, 16, v%d" % (XU + 4 * e + 2 * d, XR + 2 * e + d))
                a("v_and_b32 v%d, s%d, v%d" % (XU + 4 * e + 2 * d + 1, S_MASK, XR + 2 * e + d))
                a("v_lshlrev_b32 v%d, 16, v%d" % (KU + 4 * e + 3 - 2 * d, KV + 2 * e + d))
                a("v_and_b32 v%d, s%d, v%d" % (KU + 4 * e + 2 - 2 * d, S_MASK, KV + 2 * e + d))
            for k in range(4):
                a("v_fma_f32 v%d, v%d, v%d, v%d" % (LN + 4 * e + k, XU + 4 * e + k, SR + 8 * e + 2 * k, SR + 8 * e + 2 * k + 1))
            for k in range(4):
                a("v_fmac_f32 v%d, s%d, v%d" % (OWN + 4 * e + k, S_DP, KU + 4 * e + k))
        a("v_and_b32 v8, 1, v7")
        a("v_lshlrev_b32 v8, 9, v8")
        a("v_lshl_add_u32 v8, v6, 5, v8")
        a("v_lshrrev_b32 v10, 1, v7")
        a("v_lshl_add_u32 v8, v10, 4, v8")
        a("s_lshl_b32 s75, s%d, 10" % S_Q)
        a("s_add_u32 s75, s75, s%d" % S_C4)
        a("s_add_u32 s75, s75, %d" % WS_HT)
        a("s_waitcnt lgkmcnt(0)")
        for src in range(3):
            for p in range(4):
                a("v_pk_add_f32 %s, %s, %s" % (vr(OWN + 2 * p, 2), vr(OWN + 2 * p, 2), vr(RX + 8 * src + 2 * p, 2)))
        for p in range(4):
            a("v_pk_fma_f32 %s, %s, %s, %s" % (vr(XU + 2 * p, 2), vr(LN + 2 * p, 2), vr(OWN + 2 * p, 2), vr(XU + 2 * p, 2)))
        H = KU
        for p in range(4):
            a("v_cvt_pk_bf16_f32 v%d, v%d, v%d" % (H + p, XU + 2 * p, XU + 2 * p + 1))
        a("v_permlane16_swap_b32 v%d, v%d" % (H, H + 2))
        a("v_permlane16_swap_b32 v%d, v%d" % (H + 1, H + 3))
        vm.issue("buffer_store_dwordx4 %s, v8, s[4:7], s75 offen sc1" % vr(H, 4), "ht")
        st("htst")

    def colsum_partial(self, src, t):
        a = self.a
        for e in range(8):
            a("v_mov_b32 v%d, 0" % (t + e))
        for j in range(4):
            for d in range(4):
                a("v_lshlrev_b32 v%d, 16, v%d" % (t + 8, src + 4 * j + d))
                a("v_and_b32 v%d, s%d, v%d" % (t + 9, S_MASK, src + 4 * j + d))
                a("v_add_f32 v%d, v%d, v%d" % (t + 2 * d, t + 2 * d, t + 8))
                a("v_add_f32 v%d, v%d, v%d" % (t + 2 * d + 1, t + 2 * d + 1, t + 9))
        for mod in ("quad_perm:[2,3,0,1] row_mask:0xf bank_mask:0xf", "row_shr:4 row_mask:0xf bank_mask:0xf bound_ctrl:0",
                    "row_shr:8 row_mask:0xf bank_mask:0xf bound_ctrl:0"):
            for e in range(8):
                a("v_add_f32_dpp v%d, v%d, v%d %s" % (t + e, t + e, t + e, mod))
        for sw in ("v_permlane16_swap_b32", "v_permlane32_swap_b32"):
            for e in range(8):
                a("v_mov_b32 v%d, v%d" % (src + e, t + e))
            for e in range(8):
                a("%s v%d, v%d" % (sw, t + e, src + e))
            for e in range(8):
                a("v_add_f32 v%d, v%d, v%d" % (t + e, t + e, src + e))
        a("v_and_b32 v%d, 1, v2" % (t + 8))
        a("v_lshlrev_b32 v%d, 5, v%d" % (t + 8, t + 8))
        a("s_add_u32 s75, s61, %d" % CSX)
        a("v_add_u32 v%d, s75, v%d" % (t + 8, t + 8))
        a("s_mov_b64 exec, 0xc000")
        self.lg.issue("ds_write_b128 v%d, %s" % (t + 8, vr(t, 4)))
        self.lg.issue("ds_write_b128 v%d, %s offset:16" % (t + 8, vr(t + 4, 4)))
        a("s_mov_b64 exec, -1")

    def colsum_final(self, t):
        a = self.a
        skip = self.label("cf")
        a("s_cmp_eq_u32 s%d, 0" % S_Q)
        a("s_cbranch_scc0 %s" % skip)
        a("s_cmp_lt_u32 s%d, 28" % S_SL)
        a("s_cbranch_scc0 %s" % skip)
        a("v_lshlrev_b32 v%d, 2, v2" % t)
        a("v_add_u32 v%d, %d, v%d" % (t + 1, CSX, t))
        a("s_mov_b64 exec, 0xffff")
        for k in range(4):
            a("ds_read_b32 v%d, v%d offset:%d" % (t + 2 + k, t + 1, 64 * k))
        a("s_waitcnt lgkmcnt(0)")
        a("v_add_f32 v%d, v%d, v%d" % (t + 2, t + 2, t + 3))
        a("v_add_f32 v%d, v%d, v%d" % (t + 4, t + 4, t + 5))
        a("v_add_f32 v%d, v%d, v%d" % (t + 2, t + 2, t + 4))
        a("buffer_store_dword v%d, v%d, s[4:7], s43 offen sc1" % (t + 2, t))
        a("s_mov_b64 exec, -1")
        a("%s:" % skip)

    def w_ops(self, s):
        return [("s_add_u32 m0, s45, %d" % (WSL * (s % 4) + 1024 * u), "s_mov_b32 s53, %d" % (229376 * s),
                 "buffer_load_dwordx4 v%d, s[12:15], s53 offen lds" % (128 + u), ("w", s)) for u in range(7)]

    def r2_ops(self, kq):
        return [("s_add_u32 m0, s45, %d" % (WSL * kq + 1024 * y), "s_add_u32 s53, s46, %d" % (16384 * (28 * kq + R1U) + 8192 * y),
                 "buffer_load_dwordx4 v4, s[16:19], s53 offen lds", ("r2", kq)) for y in range(7)]

    def h_ops(self, hs):
        return [("s_add_u32 m0, s45, %d" % (8192 * (hs % 5) + 1024 * u), "s_add_u32 s53, s46, %d" % (131072 * hs + 16384 * u),
                 "buffer_load_dwordx4 v128, s[4:7], s53 offen sc1 lds", ("h", hs)) for u in range(2)]

    def gemm1(self):
        a, vm, lg, st, hi = self.a, self.vm, self.lg, self.st, self.hi
        nb = 3 if hi else 4
        b0 = 4 if hi else 0
        a("s_and_b32 s40, s%d, 15" % S_SL)
        a("s_lshr_b32 s41, s%d, 4" % S_SL)
        a("s_lshl_b32 s42, s%d, 1" % S_X)
        a("s_add_u32 s41, s41, s42")
        if hi:
            a("s_and_b32 s75, s%d, 1" % S_Q)
            a("s_mul_i32 s76, s75, 448")
            a("s_mul_i32 s77, s40, 224")
            a("s_movk_i32 s44, 4682")
            for u in range(7):
                a("v_add_u32 v16, s76, v2")
                if u:
                    a("v_add_u32 v16, %d, v16" % (64 * u))
                a("v_mul_u32_u24 v17, s44, v16")
                a("v_lshrrev_b32 v17, 16, v17")
                a("v_mul_u32_u24 v18, 14, v17")
                a("v_sub_u32 v18, v16, v18")
                a("v_mul_u32_u24 v17, 3584, v17")
                a("v_lshl_add_u32 v17, v18, 4, v17")
                a("v_add_u32 v%d, s77, v17" % (128 + u))
            a("s_lshr_b32 s76, s%d, 1" % S_Q)
            a("s_mul_i32 s45, s76, %d" % UPB)
            a("s_mul_i32 s75, s75, 7168")
            a("s_add_u32 s45, s45, s75")
            a("s_mul_i32 s46, s%d, %d" % (S_Q, 7 * 8192))
            for s in range(4):
                ops = self.w_ops(s)
                if s == 3:
                    self.late_w3 = ops
                    break
                for op in ops:
                    self.dma(*op)
        else:
            a("v_lshlrev_b32 v16, 2, v7")
            a("v_xor_b32 v16, v16, v6")
            a("v_lshlrev_b32 v16, 4, v16")
            a("v_lshl_add_u32 v128, v7, 12, v16")
            a("s_lshl_b32 s45, s3, 11")
            a("s_add_u32 s45, s45, %d" % HR)
            a("s_lshl_b32 s46, s3, 15")
            a("s_lshl_b32 s75, s41, 8")
            a("s_add_u32 s46, s46, s75")
            a("s_add_u32 s46, s46, %d" % WS_HT)
        a("v_and_b32 v16, 1, v7")
        a("v_lshrrev_b32 v17, 1, v7")
        a("v_lshrrev_b32 v18, 2, v6")
        a("v_lshl_add_u32 v19, v17, 3, v18")
        a("v_and_b32 v20, 1, v6")
        a("v_bfe_u32 v21, v6, 1, 1")
        a("v_lshl_add_u32 v22, v20, 1, v21")
        a("v_mul_u32_u24 v8, 224, v19")
        a("v_lshl_add_u32 v8, v22, 3, v8")
        a("v_mul_u32_u24 v22, %d, v16" % UPB)
        a("v_add_u32 v8, v8, v22")
        a("v_add_u32 v8, %d, v8" % (32 * b0))
        a("v_lshl_add_u32 v22, v16, 1, v21")
        a("v_lshlrev_b32 v18, 2, v18")
        a("s_lshl_b32 s75, s%d, 2" % S_Q)
        a("v_add_u32 v9, s75, v22")
        a("v_xor_b32 v9, v9, v18")
        a("v_lshlrev_b32 v9, 4, v9")
        a("v_lshl_add_u32 v9, v20, 3, v9")
        a("v_lshl_add_u32 v9, v19, 8, v9")
        a("v_add_u32 v9, %d, v9" % HR)
        a("s_lshr_b32 s75, s%d, 3" % S_SL)
        a("s_and_b32 s75, s75, 1")
        a("s_lshl_b32 s75, s75, 3")
        a("s_add_u32 s75, s75, %d" % (4 if hi else 0))
        a("v_add_u32 v10, s75, v22")
        a("v_xor_b32 v10, v10, v18")
        a("v_lshlrev_b32 v10, 4, v10")
        a("v_lshl_add_u32 v10, v20, 3, v10")
        a("v_lshl_add_u32 v10, v19, 8, v10")
        a("s_and_b32 s75, s%d, 1" % S_Q)
        a("s_lshl_b32 s75, s75, 12")
        a("s_add_u32 s75, s75, %d" % HR)
        a("v_add_u32 v10, s75, v10")
        a("s_and_b32 s47, s%d, 7" % S_SL)
        a("s_lshl_b32 s47, s47, 1")
        a("s_lshr_b32 s75, s%d, 1" % S_Q)
        a("s_add_u32 s47, s47, s75")
        a("v_lshlrev_b32 v11, 5, v17")
        a("v_add_u32 v11, %d, v11" % (L_CS + 64 * b0))
        S1, S2, TMP = 12, 14, 136
        for k in range(4):
            a("v_mov_b32 v%d, 0" % (12 + k))
        vm.wait("ht")
        st("hdrain")
        a("s_barrier")
        if hi:
            for op in self.late_w3:
                self.dma(*op)
        else:
            skip, nl = self.label("w2"), self.label("w2n")
            a("s_cmp_eq_u32 s3, 0")
            a("s_cbranch_scc0 %s" % skip)
            self.signal(2, 20)
            self.leaders_addr(2, 24, 48)
            a("s_cmp_eq_u32 s%d, 0" % S_SL)
            a("s_cbranch_scc0 %s" % nl)
            self.wait_group(2, 32, 20)
            self.leader_publish(2, 20)
            a("%s:" % nl)
            self.wait_leaders(2, 24, 48, 20, False)
            a("%s:" % skip)
        st("sync2")
        a("s_barrier")
        pend = []
        if not hi:
            for hs in range(5):
                for op in self.h_ops(hs):
                    self.dma(*op)
                if hs == 1:
                    a("v_mov_b32 v16, 0x80000000")
                    a("v_cmp_gt_u32 vcc, 28, v2")
                    a("v_cndmask_b32 v16, v16, v3, vcc")
                    a("s_and_b32 s75, s3, 1")
                    a("s_mul_i32 s76, s75, 7168")
                    a("s_mul_i32 s77, s40, 448")
                    a("s_add_u32 s76, s76, s77")
                    a("s_add_u32 s76, s76, %d" % WS_CS)
                    a("s_lshl_b32 s75, s75, 9")
                    a("s_add_u32 m0, s75, %d" % L_CS)
                    a("s_mov_b32 exec_hi, 0")
                    vm.issue("buffer_load_dwordx4 v16, s[4:7], s76 offen sc1 lds")
                    a("s_mov_b64 exec, -1")
        ACC, FA, FB = 16, 80, 112

        def reads(step):
            s, ks = divmod(step, 4)
            hs = step // 2
            buf = step & 1
            out = []
            for h in range(2):
                out.append(("ds_read_b64_tr_b16 %s, v9 offset:%d" % (vr(FB + 4 * buf + 2 * h, 2), 8192 * (hs % 5) + 4096 * (ks & 1) + 1024 * h), ("b", step)))
            for blk in range(nb):
                for h in range(2):
                    out.append(("ds_read_b64_tr_b16 %s, v8 offset:%d" % (vr(FA + 16 * buf + 4 * blk + 2 * h, 2), WSL * (s % 4) + 3584 * ks + 896 * h + 32 * blk), ("a", step, blk)))
            return out

        def arrive(hs):
            if hi:
                if hs % 2 == 0:
                    vm.wait(("w", hs // 2), " lgkmcnt(0)")
                else:
                    a("s_waitcnt lgkmcnt(0)")
            else:
                vm.wait(("h", hs), " lgkmcnt(0)")
            lg.drained()
            a("s_barrier")
            skip = self.label("rs")
            a("s_cmp_eq_u32 s47, %d" % hs)
            a("s_cbranch_scc0 %s" % skip)
            for h in range(2):
                a("ds_read_b64_tr_b16 %s, v10 offset:%d" % (ar(8 * R1U + 2 * h, 2), 8192 * (hs % 5) + 1024 * h))
            a("s_waitcnt lgkmcnt(0)")
            a("%s:" % skip)
            if hi:
                if hs >= 2 and hs % 2 == 0:
                    s = hs // 2 - 1
                    pend.extend(self.w_ops(s + 4) if s < 4 else self.r2_ops(s - 4))
                if hs == 13:
                    for y in range(4):
                        pend.append(("s_add_u32 m0, s57, %d" % (HR + 8192 + 1024 * y), "s_add_u32 s53, s58, %d" % (16384 * (R1U + 14) + 8192 * y),
                                     "buffer_load_dwordx4 v4, s[16:19], s53 offen lds", ("r2", 4)))
            elif hs >= 1 and hs + 4 < 16:
                pend.extend(self.h_ops(hs + 4))

        if hi:
            a("s_lshl_b32 s57, s%d, 12" % S_Q)
            a("s_mul_i32 s58, s%d, %d" % (S_Q, 28 * 16384))
        arrive(0)
        st("g1first")
        for r in reads(0):
            lg.issue(*r)
        for step in range(32):
            buf = step & 1
            nxt = []
            if step + 1 < 32:
                if (step + 1) % 2 == 0:
                    arrive((step + 1) // 2)
                nxt = reads(step + 1)
            fill = []
            for d in (2, 3) if hi else (0, 1):
                src = FB + 4 * buf + d
                t = TMP + 2 * (d & 1)
                fill += ["v_lshlrev_b32 v%d, 16, v%d" % (t, src), "v_and_b32 v%d, s%d, v%d" % (t + 1, S_MASK, src),
                         "v_add_f32 v%d, v%d, v%d" % (S1, S1, t), "v_add_f32 v%d, v%d, v%d" % (S1 + 1, S1 + 1, t + 1),
                         "v_fmac_f32 v%d, v%d, v%d" % (S2, t, t), "v_fmac_f32 v%d, v%d, v%d" % (S2 + 1, t + 1, t + 1)]
            per_r = -(-len(nxt) // nb)
            per_f = -(-len(fill) // nb)
            for blk in range(nb):
                lg.wait(("a", step, blk))
                c = vr(ACC + 16 * blk, 16) if step else "0"
                a("v_mfma_f32_32x32x16_bf16 %s, %s, %s, %s" % (vr(ACC + 16 * blk, 16), vr(FA + 16 * buf + 4 * blk, 4), vr(FB + 4 * buf, 4), c))
                for _ in range(per_r):
                    if nxt:
                        lg.issue(*nxt.pop(0))
                for _ in range(per_f):
                    if fill:
                        a(fill.pop(0))
                if pend and (blk < 2 if hi else blk == 1):
                    self.dma(*pend.pop(0))
            assert not nxt and not fill
        assert not pend
        st("g1loop")
        a("v_add_f32 v12, v12, v13")
        a("v_add_f32 v13, v14, v15")
        a("v_mov_b32 v14, v12")
        a("v_mov_b32 v15, v13")
        a("v_permlane32_swap_b32 v12, v14")
        a("v_permlane32_swap_b32 v13, v15")
        a("v_add_f32 v12, v12, v14")
        a("v_add_f32 v13, v13, v15")
        a("v_and_b32 v8, 31, v2")
        a("v_lshlrev_b32 v8, 3, v8")
        a("s_lshl_b32 s75, s%d, 9" % S_Q)
        a("s_add_u32 s75, s75, %d" % L_ST)
        a("v_add_u32 v8, s75, v8")
        a("ds_write_b64 v8, v[12:13] offset:%d" % (256 if hi else 0))
        CSR, Z, O = 80, 112, 120

        def cs_reads(blk):
            b = CSR + 16 * (blk & 1)
            for k in range(4):
                lg.issue("ds_read_b128 %s, v11 offset:%d" % (vr(b + 4 * k, 4), 512 * (k >> 1) + 64 * blk + 16 * (k & 1)), ("cs", blk))

        a("s_waitcnt lgkmcnt(0)")
        lg.drained()
        a("s_barrier")
        if hi:
            for op in self.r2_ops(3):
                self.dma(*op)
        lg.issue("ds_read_b64 v[14:15], v8 offset:%d" % (0 if hi else 256), "pst")
        cs_reads(0)
        a("s_lshl_b32 s48, s41, 2")
        a("s_add_u32 s48, s48, s%d" % S_Q)
        a("s_mul_i32 s48, s48, 112")
        a("s_mul_i32 s49, s40, 7")
        a("s_add_u32 s48, s48, s49")
        a("s_add_u32 s48, s48, %d" % b0)
        a("s_lshl_b32 s48, s48, 10")
        a("s_add_u32 s48, s48, %d" % WS_HH)
        lg.wait("pst")
        a("v_add_f32 v12, v12, v14")
        a("v_add_f32 v13, v13, v15")
        a("v_mul_f32 v12, 0x%x, v12" % INV512)
        a("v_mul_f32 v14, 0x%x, v13" % INV512)
        a("v_fma_f32 v14, -v12, v12, v14")
        a("v_max_f32 v14, 0, v14")
        a("v_add_f32 v14, 0x%x, v14" % EPS_BITS)
        a("v_rsq_f32 v13, v14")
        a("v_mul_f32 v8, 0x%x, v13" % LOG2E_NEG)
        a("v_sub_f32 v12, 0, v12")
        for blk in range(nb):
            if blk + 1 < nb:
                cs_reads(blk + 1)
            lg.wait(("cs", blk))
            b = CSR + 16 * (blk & 1)
            G = ACC + 16 * blk
            o = O + 4 * (blk & 1)
            for p in range(8):
                a("v_pk_fma_f32 %s, %s, v[12:13], %s op_sel_hi:[1,0,1]" % (vr(G + 2 * p, 2), vr(b + 2 * p, 2), vr(G + 2 * p, 2)))
            for p in range(4):
                a("v_pk_mul_f32 %s, %s, v[8:9] op_sel_hi:[1,0]" % (vr(Z + 2 * p, 2), vr(G + 2 * p, 2)))
            for e in range(8):
                a("v_exp_f32 v%d, v%d" % (Z + e, Z + e))
            for p in range(4):
                a("v_pk_mul_f32 %s, %s, %s" % (vr(G + 2 * p, 2), vr(G + 2 * p, 2), vr(G + 8 + 2 * p, 2)))
            for p in range(4):
                a("v_pk_fma_f32 %s, %s, v[14:15], v[14:15] op_sel_hi:[1,0,0]" % (vr(Z + 2 * p, 2), vr(Z + 2 * p, 2)))
            for e in range(8):
                a("v_rcp_f32 v%d, v%d" % (Z + e, Z + e))
            for p in range(4):
                a("v_pk_mul_f32 %s, %s, %s" % (vr(G + 2 * p, 2), vr(G + 2 * p, 2), vr(Z + 2 * p, 2)))
            for p in range(4):
                a("v_cvt_pk_bf16_f32 v%d, v%d, v%d" % (o + p, G + 2 * p, G + 2 * p + 1))
            self.store_pair("buffer_store_dwordx4 %s, v3, s[4:7], s48 offen offset:%d" % (vr(o, 4), 1024 * blk))
        st("g1epi")

    def gemm2(self):
        a, vm, lg, st, hi = self.a, self.vm, self.lg, self.st, self.hi
        tbi = 1 if hi else 0
        ACC, FA, HH, NR = 16, 48, 64, 20
        a("s_lshr_b32 s40, s%d, 3" % S_SL)
        a("s_lshl_b32 s41, s%d, 2" % S_X)
        a("s_add_u32 s40, s40, s41")
        a("s_lshl_b32 s40, s40, 1")
        a("s_add_u32 s40, s40, %d" % tbi)
        a("s_mul_i32 s41, s40, 112")
        a("s_mul_i32 s42, s%d, 28" % S_Q)
        a("s_add_u32 s41, s41, s42")
        a("s_lshl_b32 s41, s41, 10")
        a("s_add_u32 s41, s41, %d" % WS_HH)
        a("s_mul_i32 s75, s%d, %d" % (S_Q, WSL))
        a("v_add_u32 v8, s75, v144")
        a("v_xor_b32 v9, 64, v8")
        a("v_add_u32 v10, %d, v8" % UPB)
        a("v_add_u32 v11, %d, v9" % UPB)
        a("s_lshl_b32 s75, s%d, 12" % S_Q)
        a("s_add_u32 s75, s75, %d" % (HR + 8192))
        a("v_add_u32 v12, s75, v144")
        a("v_xor_b32 v13, 64, v12")
        a("s_lshl_b32 s75, s%d, 11" % S_Q)
        a("s_add_u32 s75, s75, %d" % (32768 * tbi))
        a("v_add_u32 v14, s75, v3")
        a("s_lshl_b32 s75, s%d, 13" % S_Q)
        a("s_add_u32 s75, s75, %d" % (32768 * tbi))
        a("v_add_u32 v15, s75, v3")
        a("v_and_b32 v5, 31, v2")
        a("v_lshlrev_b32 v5, 10, v5")
        a("v_lshrrev_b32 v6, 5, v2")
        a("v_lshl_add_u32 v5, v6, 4, v5")
        a("s_lshl_b32 s43, s40, 15")
        a("s_and_b32 s75, s%d, 7" % S_SL)
        a("s_lshl_b32 s75, s75, 7")
        a("s_add_u32 s43, s43, s75")
        a("s_lshl_b32 s75, s%d, 5" % S_Q)
        a("s_add_u32 s43, s43, s75")
        vm.drain()
        st("g1drain")
        a("s_barrier")
        if not hi:
            skip, last = self.label("w3"), self.label("w3e")
            a("s_cmp_eq_u32 s3, 0")
            a("s_cbranch_scc0 %s" % skip)
            self.signal(3, 20)
            a("s_cmp_eq_u32 s2, 0")
            a("s_cbranch_scc0 %s" % last)
            a("v_mov_b32 v20, s%d" % S_NONCE)
            a("v_mov_b32 v21, 0")
            a("s_mov_b32 s75, %d" % WS_EPOCH)
            a("s_mov_b64 exec, 1")
            a("buffer_store_dword v20, v21, s[4:7], s75 offen sc1")
            a("s_mov_b64 exec, -1")
            a("%s:" % last)
            self.wait_group(3, 16, 20)
            a("%s:" % skip)
        st("sync3")
        a("s_barrier")

        def load(u):
            if u % 4 == 0:
                a("s_add_u32 s53, s41, %d" % (1024 * u))
            vm.issue("buffer_load_dwordx4 %s, v3, s[4:7], s53 offen offset:%d sc1" % (vr(HH + 4 * (u % NR), 4), 1024 * (u % 4)), ("hh", u))

        def reads(u):
            w = u - R1U
            va, off = (8, 2048 * w) if w < 7 else (10, 2048 * (w - 7)) if w < 14 else (12, 2048 * (w - 14))
            for cb in range(2):
                for h in range(2):
                    lg.issue("ds_read_b64_tr_b16 %s, v%d offset:%d" % (vr(FA + 8 * (u & 1) + 4 * cb + 2 * h, 2), va + cb, off + 512 * h), ("w2", u))

        for u in range(NR):
            load(u)
        for u in range(28):
            if u + 1 >= R1U and u + 1 < 28:
                reads(u + 1)
            vm.wait(("hh", u))
            if u == 0:
                st("g2first")
            if u >= R1U:
                lg.wait(("w2", u))
            for cb in range(2):
                c = vr(ACC + 16 * cb, 16) if u else "0"
                av = ar(8 * u + 4 * cb, 4) if u < R1U else vr(FA + 8 * (u & 1) + 4 * cb, 4)
                a("v_mfma_f32_32x32x16_bf16 %s, %s, %s, %s" % (vr(ACC + 16 * cb, 16), av, vr(HH + 4 * (u % NR), 4), c))
            if u + NR < 28:
                load(u + NR)
        st("g2loop")
        a("s_barrier")
        for dst in range(4):
            for k in range(2):
                a("ds_write_b128 v14, %s offset:%d" % (vr(ACC + 8 * dst + 4 * k, 4), 8192 * dst + 1024 * k))
        T, P = 48, 64
        for d in range(4):
            a("v_accvgpr_read_b32 v%d, a%d" % (56 + d, 8 * R1U + d))
        for d in range(4):
            a("v_lshlrev_b32 v%d, 16, v%d" % (T + 2 * d, 56 + d))
            a("v_and_b32 v%d, s%d, v%d" % (T + 2 * d + 1, S_MASK, 56 + d))
        a("s_waitcnt lgkmcnt(0)")
        a("s_barrier")
        for k in range(8):
            a("ds_read_b128 %s, v15 offset:%d" % (vr(P + 4 * k, 4), 1024 * k))
        for src in range(4):
            a("s_waitcnt lgkmcnt(%d)" % (6 - 2 * src))
            for p in range(4):
                a("v_pk_add_f32 %s, %s, %s" % (vr(T + 2 * p, 2), vr(T + 2 * p, 2), vr(P + 8 * src + 2 * p, 2)))
        for p in range(4):
            a("v_cvt_pk_bf16_f32 v%d, v%d, v%d" % (56 + p, T + 2 * p, T + 2 * p + 1))
        vm.issue("buffer_store_dwordx4 v[56:59], v5, s[20:23], s43 offen")
        st.flush()
        a("s_endpgm")


def kernel():
    a = Asm()
    name = NAME + "_kernel"
    a(".globl %s" % name)
    a(".p2align 8")
    a(".type %s,@function" % name)
    a("%s:" % name)
    a("s_cmp_ge_u32 s2, 256")
    a("s_cbranch_scc0 k_go")
    a("s_endpgm")
    a("k_go:")
    lo, hi = Prog(a, False), Prog(a, True)
    lo.st("rstart", True)
    lo.st("start")
    hi.st.n, hi.st.names = lo.st.n, list(lo.st.names)
    a("s_load_dwordx16 s[40:55], s[0:1], 0")
    a("s_load_dwordx8 s[56:63], s[0:1], 64")
    a("s_load_dwordx2 s[64:65], s[0:1], 96")
    a("s_getreg_b32 s%d, hwreg(HW_REG_XCC_ID, 0, 4)" % S_XCC)
    a("v_lshrrev_b32 v1, 6, v0")
    a("v_and_b32 v2, 63, v0")
    a("v_readfirstlane_b32 s3, v1")
    a("v_lshlrev_b32 v3, 4, v2")
    a("s_and_b32 s%d, s%d, 7" % (S_XCC, S_XCC))
    a("s_add_u32 s%d, s%d, 1" % (S_XCC, S_XCC))
    a("s_and_b32 s%d, s2, 7" % S_X)
    a("s_lshr_b32 s%d, s2, 3" % S_SL)
    a("s_mov_b32 s%d, 0xffff0000" % S_MASK)
    a("s_mov_b32 s%d, 0" % S_V)
    a("s_and_b32 s%d, s3, 3" % S_Q)
    a("s_lshl_b32 s75, s%d, 6" % S_X)
    a("s_lshl_b32 s76, s%d, 1" % S_SL)
    a("s_add_u32 s75, s75, s76")
    a("s_lshr_b32 s76, s3, 2")
    a("s_add_u32 s75, s75, s76")
    a("s_lshl_b32 s%d, s75, 12" % S_C4)
    a("s_cmp_ge_u32 s3, 4")
    a("s_cbranch_scc1 k_hi")
    lo.phase_a_lo()
    lo.conv()
    lo.gemm1()
    lo.gemm2()
    a("k_hi: ; reset")
    hi.phase_a_hi()
    hi.conv()
    hi.gemm1()
    hi.gemm2()
    desc = """.amdhsa_kernel %s
  .amdhsa_next_free_vgpr 256
  .amdhsa_next_free_sgpr 102
  .amdhsa_accum_offset %d
  .amdhsa_group_segment_fixed_size 0
  .amdhsa_kernarg_size 104
  .amdhsa_user_sgpr_count 2
  .amdhsa_user_sgpr_kernarg_segment_ptr 1
  .amdhsa_system_sgpr_workgroup_id_x 1
  .amdhsa_float_denorm_mode_32 3
.end_amdhsa_kernel
""" % (name, NARCH)
    return a.finish(), desc, lo.st.names, hi.st.names


def build():
    ref = open("cdna_kernels/%s.s.ref" % NAME).read().split("\n")
    out = [l for l in ref if l.startswith(";") and "@launch" not in l]
    body, desc, n1, n2 = kernel()
    out.append("; @launch grid=(256,1,1) block=(512,1,1) lds=%d" % LDS_BYTES)
    if DIAG:
        out.append("; stamps lo: " + ",".join(n1))
        out.append("; stamps hi: " + ",".join(n2))
    out += ['.amdgcn_target "amdgcn-amd-amdhsa--gfx950"', ".text", body, '.section .rodata,"a"', ".p2align 6", desc]
    return "\n".join(out)


if __name__ == "__main__":
    args = sys.argv[1:]
    if "-diag" in args:
        args.remove("-diag")
        DIAG = True
    for x in list(args):
        if "=" in x:
            k, v = x.split("=")
            OPT[k] = int(v)
            args.remove(x)
    path = args[0] if args else "cdna_kernels/%s.s" % NAME
    txt = build()
    open(path, "w").write(txt)
    print("wrote", path, len(txt))
```
